```python
import torch

def _softmax(x, axis=-1):
    return torch.softmax(x, dim=axis)

def _gelu(x):
    return torch.nn.functional.gelu(x, approximate='tanh')

def _silu(x):
    return torch.nn.functional.silu(x)

def _sigmoid(x):
    return torch.sigmoid(x)

def _layernorm(x, axis=-1, eps=1e-05):
    m = x.mean(dim=axis, keepdim=True)
    v = x.var(dim=axis, keepdim=True, unbiased=False)
    return (x - m) / torch.sqrt(v + eps)

def _scatter_add(tgt, idx, src, axis=0):
    return tgt.clone().index_add_(axis, idx, src)

def _segment_sum(src, seg, n):
    out = torch.zeros((n,) + src.shape[1:], dtype=src.dtype)
    return out.index_add_(0, seg, src)

def _pad(x, pw):
    flat = tuple((v for pair in reversed(pw) for v in pair))
    return torch.nn.functional.pad(x, flat)
kernel_name = 'interleave_layers__grouped_kv_mqa__memory_aug_recurrent_mem_tr__prompt'

def setup_inputs():

    _w = lambda a: (lambda t: t.to(torch.bfloat16) if t.is_floating_point() else t)(torch.as_tensor(a))

    def _A_setup():
        B, S, D, H = (1, 2048, 512, 32)
        Dh = D // H
        return {'x': _w((lambda *s: torch.randn(*s, dtype=torch.bfloat16) * 0.05)(B, S, D)), 'wq': _w((lambda *s: torch.randn(*s, dtype=torch.bfloat16) * 0.05)(D, H * Dh)), 'wk': _w((lambda *s: torch.randn(*s, dtype=torch.bfloat16) * 0.05)(D, Dh)), 'wv': _w((lambda *s: torch.randn(*s, dtype=torch.bfloat16) * 0.05)(D, Dh)), 'wo': _w((lambda *s: torch.randn(*s, dtype=torch.bfloat16) * 0.05)(H * Dh, D))}
    _A_in = _A_setup()

    def _B_setup():
        B, S, Dm = (1, 2048, 512)
        H, Dh = (32, 128)
        M, seg = (8, 32)
        seg = min(seg, S)
        S = S // seg * seg
        return {'x': _w((lambda *s: torch.randn(*s, dtype=torch.bfloat16) * 0.05)(B, S, Dm)), 'mem0': _w((lambda *s: torch.randn(*s, dtype=torch.bfloat16) * 0.8)(B, M, Dm)), 'Wq': _w((lambda *s: torch.randn(*s, dtype=torch.bfloat16) * 1.6)(Dm, H, Dh) * Dm ** (-0.5)), 'Wk': _w((lambda *s: torch.randn(*s, dtype=torch.bfloat16) * 1.6)(Dm, H, Dh) * Dm ** (-0.5)), 'Wv': _w((lambda *s: torch.randn(*s, dtype=torch.bfloat16) * 0.8)(Dm, H, Dh) * Dm ** (-0.5)), 'Wo': _w((lambda *s: torch.randn(*s, dtype=torch.bfloat16) * 0.8)(H, Dh, Dm) * (H * Dh) ** (-0.5)), 'seg_len': seg}
    _B_in = _B_setup()
    return {'A_x': _A_in['x'], 'A_wq': _A_in['wq'], 'A_wk': _A_in['wk'], 'A_wv': _A_in['wv'], 'A_wo': _A_in['wo'], 'B_x': _B_in['x'], 'B_mem0': _B_in['mem0'], 'B_Wq': _B_in['Wq'], 'B_Wk': _B_in['Wk'], 'B_Wv': _B_in['Wv'], 'B_Wo': _B_in['Wo'], 'B_seg_len': _B_in['seg_len']}

def reference(A_x, A_wq, A_wk, A_wv, A_wo, B_x, B_mem0, B_Wq, B_Wk, B_Wv, B_Wo, B_seg_len):

    def _A_ref(x, wq, wk, wv, wo):
        B, S, D = x.shape
        H = 32
        Dh = D // H
        q = (lambda x, *d: x.permute(*d))((x @ wq).reshape(B, S, H, Dh), 0, 2, 1, 3)
        k = x @ wk
        v = x @ wv
        scores = torch.einsum('bhqd,bkd->bhqk', q, k) * Dh ** (-0.5)
        p = _softmax(scores, axis=-1)
        o = torch.einsum('bhqk,bkd->bhqd', p, v)
        return (lambda x, *d: x.permute(*d))(o, 0, 2, 1, 3).reshape(B, S, H * Dh) @ wo

    def _B_ref(x, mem0, Wq, Wk, Wv, Wo, seg_len):
        B, S, Dm = x.shape
        H, Dh = (Wq.shape[1], Wq.shape[2])
        M = mem0.shape[1]
        scale = Dh ** (-0.5)
        n_seg = S // seg_len
        L = M + seg_len
        idx = torch.arange(L)
        mask = (idx[:, None] < M) | (idx[:, None] >= idx[None, :])
        mem = mem0
        outs = []
        for s in range(n_seg):
            xs = x[:, s * seg_len:(s + 1) * seg_len, :].clone()
            h = torch.concatenate([mem, xs], axis=1)
            q = torch.einsum('btd,dhe->bhte', h, Wq)
            k = torch.einsum('btd,dhe->bhte', h, Wk)
            v = torch.einsum('btd,dhe->bhte', h, Wv)
            scores = torch.einsum('bhqe,bhke->bhqk', q, k) * scale
            scores = torch.where(mask[None, None], scores, -1000000000.0)
            p = _softmax(scores, axis=-1)
            o = torch.einsum('bhqk,bhke->bhqe', p, v)
            o = torch.einsum('bhte,hed->btd', o, Wo)
            mem = o[:, :M, :].clone()
            outs.append(o[:, M:, :])
        return torch.concatenate(outs, axis=1)
    x = A_x
    x = x + _A_ref(_layernorm(x, axis=-1), A_wq, A_wk, A_wv, A_wo)
    x = x + _B_ref(_layernorm(x, axis=-1), B_mem0, B_Wq, B_Wk, B_Wv, B_Wo, B_seg_len)
    x = x + _A_ref(_layernorm(x, axis=-1), A_wq, A_wk, A_wv, A_wo)
    x = x + _B_ref(_layernorm(x, axis=-1), B_mem0, B_Wq, B_Wk, B_Wv, B_Wo, B_seg_len)
    return x
```

```python
import re

KARG = dict(A_x=0, A_wq=8, A_wk=16, A_wv=24, A_wo=32, B_x=40, B_mem0=48, B_Wq=56, B_Wk=64,
            B_Wv=72, B_Wo=80, seg=88, out=96, dbg=104, ws=112)
WS_BYTES = 0x10000000


class Kern:
    def __init__(self, name, block, grid, lds=0):
        self.name = name
        self.block = block
        self.grid = grid
        self.lds = lds
        self.lines = []
        self.vgpr = 8
        self.agpr = 0
        self.sgpr = 32
        self._lab = 0

    def __call__(self, s):
        for ln in s.strip("\n").split("\n"):
            ln = ln.strip()
            if not ln:
                continue
            if ln.startswith("buffer_") or ln.startswith("global_"):
                m = re.search(r"offset:(\d+)", ln)
                if m and int(m.group(1)) >= 4096:
                    raise ValueError("MUBUF/global offset too large (assembler would wrap it): " + ln)
            if ln.endswith(":") and not ln.startswith("."):
                self.lines.append(ln)
            else:
                self.lines.append("  " + ln)

    def lab(self, base="L"):
        self._lab += 1
        return f".L{self.name}_{base}{self._lab}"

    def srd(self, s, karg, nbytes):
        self(f"s_load_dwordx2 s[{s}:{s+1}], s[0:1], {karg}")

    def srd_finish(self, s, nbytes):
        self(f"s_and_b32 s{s+1}, s{s+1}, 0xffff")
        self(f"s_mov_b32 s{s+2}, 0x{nbytes:x}")
        self(f"s_mov_b32 s{s+3}, 0x00020000")

    def text(self):
        n = self.name
        return (f".globl {n}\n.p2align 8\n.type {n},@function\n{n}:\n" + "\n".join(self.lines) + "\n")

    def descriptor(self):
        v = self.vgpr
        acc = (v + 3) // 4 * 4
        nfv = v if self.agpr == 0 else acc + self.agpr
        return (f".p2align 6\n.amdhsa_kernel {self.name}\n"
                f"  .amdhsa_next_free_vgpr {nfv}\n"
                f"  .amdhsa_next_free_sgpr {self.sgpr}\n"
                f"  .amdhsa_accum_offset {acc}\n"
                f"  .amdhsa_group_segment_fixed_size 0\n"
                f"  .amdhsa_kernarg_size 120\n"
                f"  .amdhsa_user_sgpr_count 2\n"
                f"  .amdhsa_user_sgpr_kernarg_segment_ptr 1\n"
                f"  .amdhsa_system_sgpr_workgroup_id_x 1\n"
                f".end_amdhsa_kernel\n")


HEADER_REF = None


def emit_file(kernels, launches, header_lines):
    out = []
    out += header_lines
    for k in launches:
        g = k.grid
        b = k.block
        out.append(f"; @launch kernel={k.name} grid=({g[0]},{g[1]},{g[2]}) block=({b[0]},{b[1]},{b[2]}) lds={k.lds}")
    out.append('.amdgcn_target "amdgcn-amd-amdhsa--gfx950"')
    out.append(".text")
    for k in kernels:
        out.append(k.text())
    out.append('.section .rodata,"a"')
    for k in kernels:
        out.append(k.descriptor())
    return "\n".join(out) + "\n"
```

```python
from asmlib import *
import layout as L


def k_attn_a():
    VB_ = 65536
    ONES = 131072
    ZEROS = ONES + 2048
    LDS = ZEROS + 2048
    k = Kern("attna_kernel", (512, 1, 1), (256, 1, 1), lds=LDS)
    k.sgpr = 40
    lend = k.lab("end")
    vQ = 8
    vK = [12, 16, 20, 24]
    vV = [28, 32, 36, 40]
    vS = [44, 60, 76, 92]
    vP = [108, 116]
    vO = 124
    vM, vMC, vKa, vVa, vVi = 140, 141, 142, 143, 144
    vT = 146
    k.vgpr = 160
    k(f"""
    s_cmp_ge_u32 s2, 256
    s_cbranch_scc1 {lend}
    s_load_dwordx2 s[4:5], s[0:1], {KARG['ws']}
    v_and_b32 v1, 63, v0
    v_lshrrev_b32 v2, 6, v0
    v_and_b32 v3, 31, v0
    v_bfe_u32 v4, v0, 5, 1
    s_lshr_b32 s16, s2, 3
    s_and_b32 s17, s2, 7
    s_waitcnt lgkmcnt(0)
    """)
    k.srd_finish(4, WS_BYTES)
    k(f"""
    v_lshlrev_b32 v{vT}, 4, v0
    s_mov_b32 s20, 0x{L.KA:x}
    s_mov_b32 s21, 0x{L.VAT:x}
    v_lshrrev_b32 v{vT+1}, 1, v0
    v_and_b32 v{vT+2}, 1, v0
    v_and_b32 v{vT+3}, 31, v{vT+1}
    v_lshl_add_u32 v{vT+3}, v{vT+2}, 5, v{vT+3}
    v_lshlrev_b32 v{vT+3}, 4, v{vT+3}
    v_lshrrev_b32 v{vT+1}, 5, v{vT+1}
    v_lshl_add_u32 v{vT+3}, v{vT+1}, 10, v{vT+3}
    v_mov_b32 v{vT+4}, v{vT}
    """)
    for it in range(8):
        k(f"buffer_load_dwordx4 v[{vS[0]+4*it}:{vS[0]+4*it+3}], v{vT+4}, s[4:7], s20 offen")
        k(f"v_add_u32 v{vT+4}, 0x2000, v{vT+4}")
    k(f"v_mov_b32 v{vT+4}, v{vT}")
    for it in range(8):
        k(f"buffer_load_dwordx4 v[{vS[2]+4*it}:{vS[2]+4*it+3}], v{vT+4}, s[4:7], s21 offen")
        k(f"v_add_u32 v{vT+4}, 0x2000, v{vT+4}")
    k(f"""
    v_and_b32 v{vT+5}, 255, v0
    v_lshrrev_b32 v{vT+5}, 1, v{vT+5}
    v_lshlrev_b32 v{vT+5}, 9, v{vT+5}
    v_lshrrev_b32 v{vT+6}, 8, v0
    v_lshl_add_u32 v{vT+5}, v{vT+6}, 4, v{vT+5}
    v_and_b32 v{vT+6}, 1, v0
    v_lshl_add_u32 v{vT+5}, v{vT+6}, 3, v{vT+5}
    v_add_u32 v{vT+5}, 0x{VB_:x}, v{vT+5}
    v_mov_b32 v{vT+6}, 0x3f803f80
    v_cmp_gt_u32 vcc, 256, v0
    v_cndmask_b32 v{vT+6}, 0, v{vT+6}, vcc
    v_mov_b32 v{vT+7}, v{vT+6}
    v_lshlrev_b32 v{vT+8}, 3, v0
    v_add_u32 v{vT+8}, 0x{ONES:x}, v{vT+8}
    ds_write_b64 v{vT+8}, v[{vT+6}:{vT+7}]
    """)
    for it in range(8):
        k(f"s_waitcnt vmcnt({15-it})")
        k(f"ds_write_b128 v{vT+3}, v[{vS[0]+4*it}:{vS[0]+4*it+3}] offset:{it*8192}")
    for it in range(8):
        k(f"s_waitcnt vmcnt({7-it})")
        b = vS[2] + 4 * it
        k(f"ds_write_b64 v{vT+5}, v[{b}:{b+1}] offset:{it*32}")
        k(f"ds_write_b64 v{vT+5}, v[{b+2}:{b+3}] offset:{it*32+256}")
    k(f"""
    s_lshl_b32 s18, s17, 8
    v_lshl_add_u32 v{vT}, v2, 5, v3
    v_add_u32 v{vT}, s18, v{vT}
    v_lshlrev_b32 v{vT}, 10, v{vT}
    v_lshl_add_u32 v{vT}, v4, 4, v{vT}
    s_lshl_b32 s19, s16, 5
    s_add_u32 s19, s19, 0x{L.QA:x}
    buffer_load_dwordx4 v[{vQ}:{vQ+3}], v{vT}, s[4:7], s19 offen
    v_lshlrev_b32 v{vKa}, 4, v1
    v_lshlrev_b32 v{vVa}, 4, v3
    v_lshl_add_u32 v{vVa}, v4, 8, v{vVa}
    v_add_u32 v{vVa}, 0x{VB_:x}, v{vVa}
    v_mov_b32 v{vT+1}, 0x{ZEROS:x}
    v_mov_b32 v{vT+2}, 0x{ONES:x}
    v_cmp_eq_u32 vcc, 16, v3
    v_cndmask_b32 v{vT+1}, v{vT+1}, v{vT+2}, vcc
    v_cmp_gt_u32 vcc, 16, v3
    v_cndmask_b32 v{vVa}, v{vT+1}, v{vVa}, vcc
    v_mov_b32 v{vT+2}, 0x800
    v_cndmask_b32 v{vVi}, 0, v{vT+2}, vcc
    v_mov_b32 v{vM}, 0xff800000
    s_waitcnt vmcnt(0) lgkmcnt(0)
    s_barrier
    """)
    l1 = k.lab("p1")
    k("s_mov_b32 s22, 0")
    k(f"{l1}:")
    for u in range(4):
        k(f"ds_read_b128 v[{vK[u]}:{vK[u]+3}], v{vKa} offset:{u*1024}")
    for u in range(4):
        k(f"s_waitcnt lgkmcnt({3-u})")
        k(f"v_mfma_f32_32x32x16_bf16 v[{vS[u]}:{vS[u]+15}], v[{vK[u]}:{vK[u]+3}], v[{vQ}:{vQ+3}], 0")
    k(f"v_add_u32 v{vKa}, 0x1000, v{vKa}")
    k("s_nop 7")
    for u in range(4):
        s = vS[u]
        for q in range(0, 16, 2):
            k(f"v_max3_f32 v{vM}, v{vM}, v{s+q}, v{s+q+1}")
    k("s_add_u32 s22, s22, 1")
    k("s_cmp_lt_u32 s22, 16")
    k(f"s_cbranch_scc1 {l1}")
    k(f"""
    v_mov_b32 v{vT}, v{vM}
    s_nop 1
    v_permlane32_swap_b32 v{vM}, v{vT}
    v_max_f32 v{vM}, v{vM}, v{vT}
    s_mov_b32 s30, 0x3eb8aa3b            ; 0.25*log2(e)
    v_mul_f32 v{vMC}, s30, v{vM}
    v_sub_f32 v{vMC}, 0, v{vMC}
    v_subrev_u32 v{vKa}, 0x10000, v{vKa}
    """)
    for q in range(16):
        k(f"v_mov_b32 v{vO+q}, 0")
    l2 = k.lab("p2")
    k("s_mov_b32 s22, 0")
    k(f"{l2}:")
    k(f"ds_read_b128 v[{vK[0]}:{vK[0]+3}], v{vKa}")
    k(f"ds_read_b128 v[{vK[1]}:{vK[1]+3}], v{vKa} offset:1024")
    for u in range(4):
        k(f"ds_read_b128 v[{vV[u]}:{vV[u]+3}], v{vVa} offset:{u*512}")
    k("s_waitcnt lgkmcnt(5)")
    k(f"v_mfma_f32_32x32x16_bf16 v[{vS[0]}:{vS[0]+15}], v[{vK[0]}:{vK[0]+3}], v[{vQ}:{vQ+3}], 0")
    k("s_waitcnt lgkmcnt(4)")
    k(f"v_mfma_f32_32x32x16_bf16 v[{vS[1]}:{vS[1]+15}], v[{vK[1]}:{vK[1]+3}], v[{vQ}:{vQ+3}], 0")
    k(f"v_add_u32 v{vKa}, 0x800, v{vKa}")
    k(f"v_add_u32 v{vVa}, v{vVi}, v{vVa}")
    k("s_nop 8")
    for u in range(2):
        s = vS[u]
        p = vP[u]
        for q in range(16):
            k(f"v_fma_f32 v{s+q}, v{s+q}, s30, v{vMC}")
        for q in range(16):
            k(f"v_exp_f32 v{s+q}, v{s+q}")
        for q in range(8):
            k(f"v_cvt_pk_bf16_f32 v{p+q}, v{s+2*q}, v{s+2*q+1}")
        k(f"s_waitcnt lgkmcnt({2-2*u})")
        k("s_nop 1")
        k(f"v_mfma_f32_32x32x16_bf16 v[{vO}:{vO+15}], v[{vV[2*u]}:{vV[2*u]+3}], v[{p}:{p+3}], v[{vO}:{vO+15}]")
        k(f"v_mfma_f32_32x32x16_bf16 v[{vO}:{vO+15}], v[{vV[2*u+1]}:{vV[2*u+1]+3}], v[{p+4}:{p+7}], v[{vO}:{vO+15}]")
    k("s_add_u32 s22, s22, 1")
    k("s_cmp_lt_u32 s22, 32")
    k(f"s_cbranch_scc1 {l2}")
    k("s_nop 15")
    k(f"""
    v_mov_b32 v{vT}, v{vO+8}
    s_nop 1
    v_permlane32_swap_b32 v{vO+8}, v{vT}
    v_add_f32 v{vO+8}, v{vO+8}, v{vT}
    v_rcp_f32 v{vT+1}, v{vO+8}
    s_nop 0
    v_fma_f32 v{vT+2}, -v{vO+8}, v{vT+1}, 1.0
    v_fma_f32 v{vT+1}, v{vT+2}, v{vT+1}, v{vT+1}
    """)
    for q in range(8):
        k(f"v_mul_f32 v{vO+q}, v{vO+q}, v{vT+1}")
    k(f"""
    v_cvt_pk_bf16_f32 v{vT+4}, v{vO}, v{vO+1}
    v_cvt_pk_bf16_f32 v{vT+5}, v{vO+2}, v{vO+3}
    v_cvt_pk_bf16_f32 v{vT+6}, v{vO+4}, v{vO+5}
    v_cvt_pk_bf16_f32 v{vT+7}, v{vO+6}, v{vO+7}
    v_lshl_add_u32 v{vT}, v2, 5, v3
    v_add_u32 v{vT}, s18, v{vT}
    v_lshlrev_b32 v{vT}, 10, v{vT}
    v_lshl_add_u32 v{vT}, v4, 3, v{vT}
    s_lshl_b32 s19, s16, 5
    s_add_u32 s19, s19, 0x{L.OA:x}
    buffer_store_dwordx2 v[{vT+4}:{vT+5}], v{vT}, s[4:7], s19 offen
    buffer_store_dwordx2 v[{vT+6}:{vT+7}], v{vT}, s[4:7], s19 offen offset:16
    """)
    k(f"{lend}:")
    k("s_endpgm")
    return k


def k_attn_b():
    k = Kern("attnb_kernel", (256, 1, 1), (512, 1, 1))
    k.sgpr = 40
    lend = k.lab("end")
    vQ, vKX, vKM = 8, 40, 72
    SX, SM = 104, 120
    T = 136
    P = 152
    vV = 8
    vVM = 40
    O = 164
    k.vgpr = 228
    k(f"""
    s_cmp_ge_u32 s2, 512
    s_cbranch_scc1 {lend}
    s_load_dwordx2 s[4:5], s[0:1], {KARG['ws']}
    v_lshrrev_b32 v1, 6, v0
    v_and_b32 v3, 31, v0
    v_bfe_u32 v4, v0, 5, 1
    s_nop 0
    v_readfirstlane_b32 s16, v1
    s_lshl_b32 s17, s2, 2
    s_add_u32 s16, s16, s17
    s_lshl_b32 s18, s16, 13            ; *8192
    s_add_u32 s19, s18, 0x{L.QB:x}
    s_add_u32 s20, s18, 0x{L.KB:x}
    s_add_u32 s21, s18, 0x{L.VBT:x}
    s_lshl_b32 s18, s16, 11            ; *2048
    s_add_u32 s22, s18, 0x{L.KM:x}
    s_add_u32 s23, s18, 0x{L.VMT:x}
    s_mov_b32 s26, 0x000000ff
    s_mov_b32 s27, 0x000000ff
    s_mov_b32 s32, 0x3db504f3
    s_mov_b32 s33, 0x3fb8aa3b
    s_waitcnt lgkmcnt(0)
    """)
    k.srd_finish(4, WS_BYTES)
    k(f"""
    v_lshlrev_b32 v5, 8, v3
    v_lshl_add_u32 v5, v4, 4, v5
    """)
    for ks in range(8):
        k(f"buffer_load_dwordx4 v[{vQ+4*ks}:{vQ+4*ks+3}], v5, s[4:7], s19 offen offset:{ks*32}")
    for ks in range(8):
        k(f"buffer_load_dwordx4 v[{vKX+4*ks}:{vKX+4*ks+3}], v5, s[4:7], s20 offen offset:{ks*32}")
    for q in range(32):
        k(f"v_mov_b32 v{vKM+q}, 0")
    k("s_mov_b64 exec, s[26:27]")
    for ks in range(8):
        k(f"buffer_load_dwordx4 v[{vKM+4*ks}:{vKM+4*ks+3}], v5, s[4:7], s22 offen offset:{ks*32}")
    k("s_mov_b64 exec, -1")
    k("s_waitcnt vmcnt(8)")
    for ks in range(8):
        c = "0" if ks == 0 else f"v[{SX}:{SX+15}]"
        k(f"v_mfma_f32_32x32x16_bf16 v[{SX}:{SX+15}], v[{vKX+4*ks}:{vKX+4*ks+3}], v[{vQ+4*ks}:{vQ+4*ks+3}], {c}")
    k("s_waitcnt vmcnt(0)")
    for ks in range(8):
        c = "0" if ks == 0 else f"v[{SM}:{SM+15}]"
        k(f"v_mfma_f32_32x32x16_bf16 v[{SM}:{SM+15}], v[{vKM+4*ks}:{vKM+4*ks+3}], v[{vQ+4*ks}:{vQ+4*ks+3}], {c}")
    k("s_nop 15")
    k("s_nop 15")
    k(f"""
    v_lshlrev_b32 v6, 6, v3
    v_lshl_add_u32 v6, v4, 3, v6
    v_lshlrev_b32 v7, 4, v3
    v_lshl_add_u32 v7, v4, 3, v7
    """)
    k("v_add_u32 v1, 0x1000, v6")
    for mt in range(4):
        for j in range(2):
            b = vV + (mt * 2 + j) * 4
            base = "v6" if mt < 2 else "v1"
            o_ = (mt % 2) * 2048 + j * 32
            k(f"buffer_load_dwordx2 v[{b}:{b+1}], {base}, s[4:7], s21 offen offset:{o_}")
            k(f"buffer_load_dwordx2 v[{b+2}:{b+3}], {base}, s[4:7], s21 offen offset:{o_ + 16}")
    for mt in range(4):
        b = vVM + 4 * mt
        k(f"buffer_load_dwordx2 v[{b}:{b+1}], v7, s[4:7], s23 offen offset:{mt*512}")
        k(f"v_mov_b32 v{b+2}, 0")
        k(f"v_mov_b32 v{b+3}, 0")
    vals = [SX + q for q in range(16)] + [SM + q for q in range(4)]
    def bf_round(vs):
        for a in range(0, len(vs), 2):
            k(f"v_cvt_pk_bf16_f32 v{T}, v{vs[a]}, v{vs[a+1]}")
            k(f"v_lshlrev_b32 v{vs[a]}, 16, v{T}")
            k(f"v_and_b32 v{vs[a+1]}, 0xffff0000, v{T}")
    bf_round(vals)
    for v in vals:
        k(f"v_mul_f32 v{v}, s32, v{v}")
    bf_round(vals)
    k(f"""
    v_lshlrev_b32 v{T+1}, 2, v4
    v_sub_u32 v{T+1}, v3, v{T+1}
    v_mov_b32 v{T+2}, 0xff800000
    """)
    for r in range(16):
        c = (r % 4) + 8 * (r // 4)
        k(f"v_cmp_le_i32 vcc, {c}, v{T+1}")
        k(f"v_cndmask_b32 v{SX+r}, v{T+2}, v{SX+r}, vcc")
    k(f"v_max3_f32 v{T+3}, v{vals[0]}, v{vals[1]}, v{vals[2]}")
    for a in range(3, 20, 2):
        if a + 1 < 20:
            k(f"v_max3_f32 v{T+3}, v{T+3}, v{vals[a]}, v{vals[a+1]}")
        else:
            k(f"v_max_f32 v{T+3}, v{T+3}, v{vals[a]}")
    k(f"""
    v_mov_b32 v{T+4}, v{T+3}
    s_nop 1
    v_permlane32_swap_b32 v{T+3}, v{T+4}
    v_max_f32 v{T+3}, v{T+3}, v{T+4}
    v_mul_f32 v{T+3}, s33, v{T+3}
    """)
    for v in vals:
        k(f"v_fma_f32 v{v}, v{v}, s33, -v{T+3}")
    for v in vals:
        k(f"v_exp_f32 v{v}, v{v}")
    k("s_nop 0")
    k(f"v_add_f32 v{T+3}, v{vals[0]}, v{vals[1]}")
    for v in vals[2:]:
        k(f"v_add_f32 v{T+3}, v{T+3}, v{v}")
    k(f"""
    v_mov_b32 v{T+4}, v{T+3}
    s_nop 1
    v_permlane32_swap_b32 v{T+3}, v{T+4}
    v_add_f32 v{T+3}, v{T+3}, v{T+4}
    v_rcp_f32 v{T+4}, v{T+3}
    s_nop 0
    v_fma_f32 v{T+5}, -v{T+3}, v{T+4}, 1.0
    v_fma_f32 v{T+4}, v{T+5}, v{T+4}, v{T+4}
    """)
    for v in vals:
        k(f"v_mul_f32 v{v}, v{v}, v{T+4}")
    for q in range(8):
        k(f"v_cvt_pk_bf16_f32 v{P+q}, v{SX+2*q}, v{SX+2*q+1}")
    k(f"v_cvt_pk_bf16_f32 v{P+8}, v{SM}, v{SM+1}")
    k(f"v_cvt_pk_bf16_f32 v{P+9}, v{SM+2}, v{SM+3}")
    k(f"v_mov_b32 v{P+10}, 0")
    k(f"v_mov_b32 v{P+11}, 0")
    k("s_waitcnt vmcnt(0)")
    k("s_nop 1")
    for mt in range(4):
        o = O + 16 * mt
        for j in range(2):
            b = vV + (mt * 2 + j) * 4
            c = "0" if j == 0 else f"v[{o}:{o+15}]"
            k(f"v_mfma_f32_32x32x16_bf16 v[{o}:{o+15}], v[{b}:{b+3}], v[{P+4*j}:{P+4*j+3}], {c}")
        b = vVM + 4 * mt
        k(f"v_mfma_f32_32x32x16_bf16 v[{o}:{o+15}], v[{b}:{b+3}], v[{P+8}:{P+11}], v[{o}:{o+15}]")
    k("s_nop 15")
    k(f"""
    s_lshr_b32 s24, s16, 5             ; seg
    s_lshl_b32 s24, s24, 18            ; seg*32*8192
    s_and_b32 s25, s16, 31
    s_lshl_b32 s25, s25, 8             ; h*256
    s_add_u32 s24, s24, s25
    s_add_u32 s24, s24, 0x{L.OB:x}
    v_lshlrev_b32 v5, 13, v3
    v_lshl_add_u32 v5, v4, 3, v5
    """)
    for mt in range(4):
        o = O + 16 * mt
        for g4 in range(4):
            r = o + 4 * g4
            k(f"v_cvt_pk_bf16_f32 v{T}, v{r}, v{r+1}")
            k(f"v_cvt_pk_bf16_f32 v{T+1}, v{r+2}, v{r+3}")
            k(f"buffer_store_dwordx2 v[{T}:{T+1}], v5, s[4:7], s24 offen offset:{(32*mt+8*g4)*2}")
            k("s_nop 0")
    k(f"{lend}:")
    k("s_endpgm")
    return k
```

```python
from asmlib import *
import layout as L


def k_transpose():
    mats = [
        (KARG['A_wq'], 512, 512, L.WT_AQKV, 0, 512),
        (KARG['A_wk'], 16, 512, L.WT_AQKV, 512, 512),
        (KARG['A_wv'], 16, 512, L.WT_AQKV, 528, 512),
        (KARG['A_wo'], 512, 512, L.WT_AO, 0, 512),
        (KARG['B_Wq'], 4096, 512, L.WT_BQKV, 0, 512),
        (KARG['B_Wk'], 4096, 512, L.WT_BQKV, 4096, 512),
        (KARG['B_Wv'], 4096, 512, L.WT_BQKV, 8192, 512),
        (KARG['B_Wo'], 512, 4096, L.WT_BO, 0, 4096),
    ]
    counts = [max(1, N // 64) * (K // 32) for (_, N, K, _, _, _) in mats]
    ncopy = 128
    total = sum(counts) + ncopy
    nwg = (total + 3) // 4
    k = Kern("tr_kernel", (256, 1, 1), (nwg, 1, 1))
    k.vgpr = 48
    k.sgpr = 32
    k(f"""
    s_load_dwordx2 s[4:5], s[0:1], {KARG['ws']}
    v_lshrrev_b32 v1, 6, v0
    v_and_b32 v0, 63, v0
    s_nop 1
    v_readfirstlane_b32 s3, v1
    s_nop 3
    s_lshl_b32 s16, s2, 2
    s_add_u32 s16, s16, s3
    """)
    labs = [k.lab("m") for _ in mats]
    lcopy = k.lab("copy")
    lbody = k.lab("body")
    lend = k.lab("end")
    for i, c in enumerate(counts):
        k(f"s_cmp_lt_u32 s16, {c}")
        k(f"s_cbranch_scc1 {labs[i]}")
        k(f"s_sub_u32 s16, s16, {c}")
    k(f"s_cmp_lt_u32 s16, {ncopy}")
    k(f"s_cbranch_scc1 {lcopy}")
    k(f"s_branch {lend}")
    for i, (karg, N, K, off, row0, ld) in enumerate(mats):
        kbn = K // 32
        lg = kbn.bit_length() - 1
        assert 1 << lg == kbn
        k(f"{labs[i]}:")
        k(f"s_load_dwordx2 s[8:9], s[0:1], {karg}")
        k(f"s_mov_b32 s10, 0x{N*K*2:x}")
        k(f"s_mov_b32 s11, 0x00020000")
        k(f"s_mov_b32 s17, {N*2}")
        k(f"s_mov_b32 s18, {ld*2}")
        k(f"s_mov_b32 s20, 0x{off + row0*ld*2:x}")
        k(f"s_mov_b32 s21, {N}")
        k(f"s_and_b32 s22, s16, {kbn-1}")
        k(f"s_lshr_b32 s23, s16, {lg}")
        k(f"s_branch {lbody}")
    k(f"{lcopy}:")
    k(f"s_load_dwordx2 s[8:9], s[0:1], {KARG['A_x']}")
    k(f"s_waitcnt lgkmcnt(0)")
    k.srd_finish(4, WS_BYTES)
    k.srd_finish(8, 2048 * 512 * 2)
    k(f"""
    s_lshl_b32 s16, s16, 14
    v_lshlrev_b32 v1, 4, v0
    v_add_u32 v1, s16, v1
    s_mov_b32 s20, 0x{L.X:x}
    """)
    for half in range(2):
        for i in range(8):
            k(f"buffer_load_dwordx4 v[{4+4*i}:{7+4*i}], v1, s[8:11], 0 offen offset:{(half*8+i)*1024 % 4096}")
            if (half * 8 + i) % 4 == 3:
                k("v_add_u32 v1, 0x1000, v1")
        k("s_waitcnt vmcnt(0)")
        k("v_subrev_u32 v2, 0x2000, v1")
        for i in range(8):
            k(f"buffer_store_dwordx4 v[{4+4*i}:{7+4*i}], v2, s[4:7], s20 offen offset:{(i*1024) % 4096}")
            if i % 4 == 3:
                k("v_add_u32 v2, 0x1000, v2")
        k("s_waitcnt vmcnt(0)")
    k(f"s_branch {lend}")
    k(f"{lbody}:")
    k("s_waitcnt lgkmcnt(0)")
    k.srd_finish(4, WS_BYTES)
    k("s_and_b32 s9, s9, 0xffff")
    k(f"""
    s_lshl_b32 s23, s23, 6
    v_add_u32 v1, s23, v0
    v_cmp_gt_u32 vcc, s21, v1
    s_and_saveexec_b64 s[24:25], vcc
    s_lshl_b32 s22, s22, 5
    s_mul_i32 s26, s22, s17
    v_lshlrev_b32 v2, 1, v1
    v_add_u32 v2, s26, v2
    """)
    for kk in range(32):
        if kk % 2 == 0:
            k(f"buffer_load_ushort v{10 + kk//2}, v2, s[8:11], 0 offen")
        else:
            k(f"buffer_load_short_d16_hi v{30 + kk//2}, v2, s[8:11], 0 offen")
        k(f"v_add_u32 v2, s17, v2")
    k(f"""
    v_mul_lo_u32 v3, v1, s18
    s_lshl_b32 s27, s22, 1
    v_add_u32 v3, s27, v3
    s_waitcnt vmcnt(0)
    """)
    for i in range(16):
        k(f"v_or_b32 v{10+i}, v{10+i}, v{30+i}")
    k(f"""
    buffer_store_dwordx4 v[10:13], v3, s[4:7], s20 offen
    buffer_store_dwordx4 v[14:17], v3, s[4:7], s20 offen offset:16
    buffer_store_dwordx4 v[18:21], v3, s[4:7], s20 offen offset:32
    buffer_store_dwordx4 v[22:25], v3, s[4:7], s20 offen offset:48
    """)
    k(f"{lend}:")
    k("s_endpgm")
    return k


def wave_allreduce_add(k, v, t):
    for r in (8, 4, 2, 1):
        k(f"v_add_f32_dpp {v}, {v}, {v} row_ror:{r} row_mask:0xf bank_mask:0xf")
        k("s_nop 1")
    k(f"v_mov_b32 {t}, {v}")
    k("s_nop 1")
    k(f"v_permlane16_swap_b32 {v}, {t}")
    k(f"v_add_f32 {v}, {v}, {t}")
    k(f"v_mov_b32 {t}, {v}")
    k("s_nop 1")
    k(f"v_permlane32_swap_b32 {v}, {t}")
    k(f"v_add_f32 {v}, {v}, {t}")


def bf16r(k, v, t=None):
    k(f"v_cvt_pk_bf16_f32 {v}, {v}, {v}")
    k(f"v_lshlrev_b32 {v}, 16, {v}")


def k_ln():
    k = Kern("ln_kernel", (256, 1, 1), (512, 1, 1))
    k.vgpr = 40
    k.sgpr = 32
    lend = k.lab("end")
    k(f"""
    s_cmp_ge_u32 s2, 512
    s_cbranch_scc1 {lend}
    s_load_dwordx2 s[4:5], s[0:1], {KARG['ws']}
    s_waitcnt lgkmcnt(0)
    """)
    k.srd_finish(4, WS_BYTES)
    k(f"""
    v_lshrrev_b32 v1, 6, v0
    v_and_b32 v2, 63, v0
    s_lshl_b32 s16, s2, 2
    v_add_u32 v1, s16, v1
    v_lshlrev_b32 v3, 10, v1
    v_lshl_add_u32 v3, v2, 4, v3
    s_mov_b32 s17, 0x{L.X:x}
    s_mov_b32 s18, 0x{L.HN:x}
    buffer_load_dwordx4 v[4:7], v3, s[4:7], s17 offen
    """)
    assert L.ZERO_BYTES <= 512 * 256 * 16
    k(f"""
    s_lshl_b32 s19, s2, 12
    v_lshl_add_u32 v30, v0, 4, s19
    v_mov_b32 v32, 0
    v_mov_b32 v33, 0
    v_mov_b32 v34, 0
    v_mov_b32 v35, 0
    s_mov_b32 s20, 0x{L.ZERO_BYTES:x}
    v_cmp_gt_u32 vcc, s20, v30
    s_and_saveexec_b64 s[24:25], vcc
    s_mov_b32 s21, 0x{L.ZERO_LO:x}
    buffer_store_dwordx4 v[32:35], v30, s[4:7], s21 offen
    s_mov_b64 exec, s[24:25]
    s_waitcnt vmcnt(1)
    """)
    for i in range(4):
        k(f"v_lshlrev_b32 v{8+2*i}, 16, v{4+i}")
        k(f"v_and_b32 v{9+2*i}, 0xffff0000, v{4+i}")
    k("""
    v_add_f32 v20, v8, v9
    v_add_f32 v21, v10, v11
    v_add_f32 v22, v12, v13
    v_add_f32 v23, v14, v15
    v_add_f32 v20, v20, v21
    v_add_f32 v22, v22, v23
    v_add_f32 v20, v20, v22
    s_nop 1
    """)
    wave_allreduce_add(k, "v20", "v21")
    k("v_mul_f32 v20, 0x3b000000, v20")
    for i in range(8):
        k(f"v_sub_f32 v{22+i}, v{8+i}, v20")
    k("v_mul_f32 v21, v22, v22")
    for i in range(1, 8):
        k(f"v_fma_f32 v21, v{22+i}, v{22+i}, v21")
    k("s_nop 1")
    wave_allreduce_add(k, "v21", "v31")
    k("v_mul_f32 v21, 0x3b000000, v21      ; var")
    bf16r(k, "v20")
    bf16r(k, "v21")
    k("v_add_f32 v21, 0x3727c5ac, v21      ; + 1e-5")
    bf16r(k, "v21")
    k("v_sqrt_f32 v21, v21")
    k("s_nop 0")
    bf16r(k, "v21")
    k("v_rcp_f32 v31, v21")
    k("s_nop 0")
    k("v_fma_f32 v30, -v21, v31, 1.0")
    k("v_fma_f32 v31, v30, v31, v31")
    for i in range(8):
        k(f"v_sub_f32 v{22+i}, v{8+i}, v20")
        bf16r(k, f"v{22+i}")
        k(f"v_mul_f32 v{22+i}, v{22+i}, v31")
    for i in range(4):
        k(f"v_cvt_pk_bf16_f32 v{4+i}, v{22+2*i}, v{23+2*i}")
    k(f"buffer_store_dwordx4 v[4:7], v3, s[4:7], s18 offen")
    k(f"{lend}:")
    k("s_endpgm")
    return k
```

```python
from asmlib import *
import layout as L

WO_L = 0
HI = 131072
MEM_O = 0
Q_O = 16384
K_O = 20480
VT_O = 24576
LDS_TOTAL = HI + 28672


def xmax(k, v, t, op):
    k(f"v_mov_b32 {t}, {v}")
    k("s_nop 1")
    k(f"v_permlane16_swap_b32 {v}, {t}")
    k(f"{op} {v}, {v}, {t}")
    k(f"v_mov_b32 {t}, {v}")
    k("s_nop 1")
    k(f"v_permlane32_swap_b32 {v}, {t}")
    k(f"{op} {v}, {v}, {t}")


def k_chain():
    k = Kern("chain_kernel", (256, 1, 1), (32, 1, 1), lds=LDS_TOTAL)
    k.sgpr = 48
    k.vgpr = 256
    k.agpr = 256
    lend = k.lab("end")
    vL16, vQw, vVTw, vVTr, vKMst, vVMst, vKx0, vKx1, vVx, vAt0, vAt1, vAccRd, vMw, vCnt, vWo = range(4, 19)
    R1 = 20
    R2 = 52
    R3 = 60
    acc1 = R3
    memB = R3 + 24
    qf = R3
    kmf = R3 + 8
    Sacc = R3 + 16
    of = R3
    wof = R3 + 8
    R4 = 92
    tmp = R4
    P = R4 + 8
    vmf = R4 + 16
    Oacc = R4 + 24
    accrd = R4
    T = 124

    def wfrag(nt, ks):
        idx = nt * 16 + ks
        if idx < 64:
            return f"a[{4*idx}:{4*idx+3}]"
        return f"v[{128 + 4*(idx-64)}:{128 + 4*(idx-64)+3}]"

    k(f"""
    s_cmp_ge_u32 s2, 32
    s_cbranch_scc1 {lend}
    s_load_dwordx2 s[4:5], s[0:1], {KARG['ws']}
    s_load_dwordx2 s[8:9], s[0:1], {KARG['B_mem0']}
    s_mov_b32 s16, s2
    v_and_b32 v1, 63, v0
    v_lshrrev_b32 v{T}, 6, v0
    v_and_b32 v2, 15, v0
    v_bfe_u32 v3, v0, 4, 2
    s_nop 0
    v_readfirstlane_b32 s17, v{T}
    s_mov_b32 s26, 0x00ff00ff
    s_mov_b32 s27, 0x00ff00ff
    s_mov_b32 s28, -1
    s_mov_b32 s29, 0
    s_mov_b32 s32, 0x3db504f3
    s_mov_b32 s33, 0x3fb8aa3b
    s_waitcnt lgkmcnt(0)
    """)
    k.srd_finish(4, WS_BYTES)
    k.srd_finish(8, 8 * 512 * 2)
    k(f"""
    v_lshlrev_b32 v{vL16}, 4, v1
    v_add_u32 v{vL16}, 0x{HI:x}, v{vL16}
    v_lshrrev_b32 v{T}, 1, v3
    v_lshlrev_b32 v{vQw}, 8, v{T}
    v_lshl_add_u32 v{vQw}, v2, 4, v{vQw}
    v_and_b32 v{T}, 1, v3
    v_lshl_add_u32 v{vQw}, v{T}, 3, v{vQw}
    s_lshl_b32 s34, s17, 10
    s_add_u32 s34, s34, 0x{HI:x}
    v_add_u32 v{vQw}, s34, v{vQw}
    v_lshlrev_b32 v{vVTw}, 7, v3
    v_lshl_add_u32 v{vVTw}, v2, 1, v{vVTw}
    s_add_u32 s35, s34, {VT_O}
    v_add_u32 v{vVTw}, s35, v{vVTw}
    v_lshlrev_b32 v{vVTr}, 5, v2
    v_lshl_add_u32 v{vVTr}, v3, 3, v{vVTr}
    v_add_u32 v{vVTr}, s35, v{vVTr}
    ; vKMst = t*256 + (32w + 4g)*2
    v_lshlrev_b32 v{vKMst}, 8, v2
    v_lshl_add_u32 v{vKMst}, v3, 3, v{vKMst}
    s_lshl_b32 s34, s17, 6
    v_add_u32 v{vKMst}, s34, v{vKMst}
    ; vVMst = (32w + 4g)*16 + t*2
    v_lshlrev_b32 v{vVMst}, 6, v3
    v_lshl_add_u32 v{vVMst}, v2, 1, v{vVMst}
    s_lshl_b32 s34, s17, 9
    v_add_u32 v{vVMst}, s34, v{vVMst}
    v_lshlrev_b32 v{vKx0}, 8, v2
    v_lshl_add_u32 v{vKx0}, v3, 4, v{vKx0}
    v_add_u32 v{vKx1}, 0x1000, v{vKx0}
    ; vVx = (32w + t16)*64 + g*8
    v_lshlrev_b32 v{vVx}, 6, v2
    v_lshl_add_u32 v{vVx}, v3, 3, v{vVx}
    s_lshl_b32 s34, s17, 11
    v_add_u32 v{vVx}, s34, v{vVx}
    v_lshlrev_b32 v{vAt0}, 13, v3
    v_lshl_add_u32 v{vAt0}, v2, 2, v{vAt0}
    s_lshl_b32 s34, s17, 9
    v_add_u32 v{vAt0}, s34, v{vAt0}
    v_add_u32 v{vAt1}, 0x1000, v{vAt0}
    v_lshlrev_b32 v{vAccRd}, 4, v1
    s_lshl_b32 s34, s17, 12
    v_add_u32 v{vAccRd}, s34, v{vAccRd}
    v_lshrrev_b32 v{T}, 3, v1
    v_lshlrev_b32 v{vMw}, 10, v{T}
    v_bfe_u32 v{T}, v1, 1, 2
    v_lshl_add_u32 v{vMw}, v{T}, 8, v{vMw}
    v_and_b32 v{T}, 1, v1
    v_lshl_add_u32 v{vMw}, v{T}, 3, v{vMw}
    s_lshl_b32 s34, s17, 5
    s_add_u32 s34, s34, 0x{HI:x}
    v_add_u32 v{vMw}, s34, v{vMw}
    v_lshlrev_b32 v{vCnt}, 7, v1
    v_lshlrev_b32 v{vWo}, 4, v1
    s_lshl_b32 s34, s17, 15
    v_add_u32 v{vWo}, s34, v{vWo}
    """)
    k(f"""
    v_mov_b32 v{T}, 0
    v_mov_b32 v{T+1}, 0
    v_mov_b32 v{T+2}, 0
    v_mov_b32 v{T+3}, 0
    v_lshlrev_b32 v{tmp}, 4, v0
    v_add_u32 v{tmp}, 0x{HI:x}, v{tmp}
    """)
    for i in range(7):
        k(f"ds_write_b128 v{tmp}, v[{T}:{T+3}] offset:{i*4096}")
    k(f"""
    ; voff = (32w + t16)*1024 + g*16
    v_lshlrev_b32 v{tmp+1}, 10, v2
    v_lshl_add_u32 v{tmp+1}, v3, 4, v{tmp+1}
    s_lshl_b32 s34, s17, 15
    v_add_u32 v{tmp+1}, s34, v{tmp+1}
    s_lshl_b32 s35, s16, 17            ; h*128*1024
    s_add_u32 s35, s35, 0x{L.WT_BQKV:x}
    """)
    for nt in range(6):
        mat = nt // 2
        k(f"s_add_u32 s36, s35, 0x{mat*4096*1024 + (nt%2)*16*1024:x}")
        for ks in range(16):
            k(f"buffer_load_dwordx4 {wfrag(nt, ks)}, v{tmp+1}, s[4:7], s36 offen offset:{ks*64}")
        k("s_waitcnt vmcnt(0)")
    k(f"""
    ; voff = t16*8192 + g*16
    v_lshlrev_b32 v{tmp+1}, 13, v2
    v_lshl_add_u32 v{tmp+1}, v3, 4, v{tmp+1}
    s_lshl_b32 s34, s17, 20            ; 128w*8192
    s_lshl_b32 s35, s16, 8             ; h*256
    s_add_u32 s34, s34, s35
    s_add_u32 s34, s34, 0x{L.WT_BO:x}
    """)
    for dt in range(8):
        k(f"s_add_u32 s36, s34, 0x{dt*16*8192:x}")
        for ks in range(4):
            k(f"buffer_load_dwordx4 v[{R3+4*ks}:{R3+4*ks+3}], v{tmp+1}, s[4:7], s36 offen offset:{ks*64}")
        k("s_waitcnt vmcnt(0)")
        for ks in range(4):
            k(f"ds_write_b128 v{vWo}, v[{R3+4*ks}:{R3+4*ks+3}] offset:{(dt*4+ks)*1024}")
    k(f"""
    s_waitcnt lgkmcnt(0)
    s_barrier
    v_lshlrev_b32 v{tmp}, 4, v0
    buffer_load_dwordx4 v[{R3}:{R3+3}], v{tmp}, s[8:11], 0 offen
    v_add_u32 v{tmp}, 0x1000, v{tmp}
    buffer_load_dwordx4 v[{R3+4}:{R3+7}], v{tmp}, s[8:11], 0 offen
    v_bfe_u32 v{tmp+1}, v0, 2, 4
    v_lshlrev_b32 v{tmp+1}, 10, v{tmp+1}
    v_and_b32 v{tmp+2}, 3, v0
    v_lshl_add_u32 v{tmp+1}, v{tmp+2}, 8, v{tmp+1}
    v_lshrrev_b32 v{tmp+2}, 6, v0
    v_lshl_add_u32 v{tmp+1}, v{tmp+2}, 4, v{tmp+1}
    v_add_u32 v{tmp+1}, 0x{HI:x}, v{tmp+1}
    s_waitcnt vmcnt(1)
    ds_write_b128 v{tmp+1}, v[{R3}:{R3+3}]
    s_waitcnt vmcnt(0)
    ds_write_b128 v{tmp+1}, v[{R3+4}:{R3+7}] offset:64
    """)
    for r in (vmf + 2, vmf + 3, vmf + 6, vmf + 7, P + 6, P + 7):
        k(f"v_mov_b32 v{r}, 0")

    def step_scalars():
        k(f"""
        s_lshl_b32 s34, s18, 5
        s_add_u32 s34, s34, s16
        s_lshl_b32 s35, s34, 13
        s_add_u32 s19, s35, 0x{L.KB:x}
        s_add_u32 s20, s35, 0x{L.VBT:x}
        s_lshl_b32 s35, s34, 11
        s_add_u32 s21, s35, 0x{L.KM:x}
        s_add_u32 s22, s35, 0x{L.VMT:x}
        s_lshl_b32 s35, s18, 14
        s_add_u32 s23, s35, 0x{L.ACC:x}
        s_lshl_b32 s35, s18, 10
        s_add_u32 s24, s35, 0x{L.CNT:x}
        """)

    def kv_prefetch():
        for T_ in range(2):
            for ks in range(4):
                b = R1 + (T_ * 4 + ks) * 4
                k(f"buffer_load_dwordx4 v[{b}:{b+3}], v{vKx1 if T_ else vKx0}, s[4:7], s19 offen offset:{ks*64}")
        for mt in range(2):
            b = R2 + 4 * mt
            k(f"buffer_load_dwordx2 v[{b}:{b+1}], v{vVx}, s[4:7], s20 offen offset:{mt*1024}")
            k(f"buffer_load_dwordx2 v[{b+2}:{b+3}], v{vVx}, s[4:7], s20 offen offset:{mt*1024+32}")

    k("s_mov_b32 s18, 0")
    step_scalars()
    kv_prefetch()
    k("s_waitcnt lgkmcnt(0)")
    k("s_barrier")
    lloop = k.lab("step")
    k(f"{lloop}:")
    for q in range(24):
        k(f"v_mov_b32 v{acc1+q}, 0")
    k(f"ds_read_b128 v[{memB}:{memB+3}], v{vL16} offset:{MEM_O}")
    k(f"ds_read_b128 v[{memB+4}:{memB+7}], v{vL16} offset:{MEM_O+1024}")
    for ks in range(16):
        b = memB + 4 * (ks % 2)
        k(f"s_waitcnt lgkmcnt({1 if ks < 15 else 0})")
        for nt in range(6):
            a = acc1 + 4 * nt
            k(f"v_mfma_f32_16x16x32_bf16 v[{a}:{a+3}], {wfrag(nt, ks)}, v[{b}:{b+3}], v[{a}:{a+3}]")
        if ks + 2 < 16:
            k(f"ds_read_b128 v[{b}:{b+3}], v{vL16} offset:{MEM_O + (ks+2)*1024}")
    k("s_nop 7")
    k("s_nop 3")
    for nt in range(6):
        a = acc1 + 4 * nt
        k(f"v_cvt_pk_bf16_f32 v{tmp+2*(nt%2)}, v{a}, v{a+1}")
        k(f"v_cvt_pk_bf16_f32 v{tmp+2*(nt%2)+1}, v{a+2}, v{a+3}")
        if nt % 2 == 1:
            mat = nt // 2
            k("s_mov_b64 exec, s[26:27]")
            if mat < 2:
                reg = Q_O if mat == 0 else K_O
                k(f"ds_write_b64 v{vQw}, v[{tmp}:{tmp+1}] offset:{reg}")
                k(f"ds_write_b64 v{vQw}, v[{tmp+2}:{tmp+3}] offset:{reg+512}")
                if mat == 1:
                    k(f"buffer_store_dwordx2 v[{tmp}:{tmp+1}], v{vKMst}, s[4:7], s21 offen")
                    k(f"buffer_store_dwordx2 v[{tmp+2}:{tmp+3}], v{vKMst}, s[4:7], s21 offen offset:32")
            else:
                for mt in range(2):
                    for r in range(4):
                        src = tmp + 2 * mt + r // 2
                        hi = "_d16_hi" if r % 2 else ""
                        k(f"ds_write_b16{hi} v{vVTw}, v{src} offset:{mt*512 + r*32}")
                        k(f"buffer_store_short{hi} v{src}, v{vVMst}, s[4:7], s22 offen offset:{mt*256 + r*16}")
            k("s_mov_b64 exec, -1")
    lfin = k.lab("fin")
    k("s_cmp_eq_u32 s18, 63")
    k(f"s_cbranch_scc1 {lfin}")
    k("s_waitcnt lgkmcnt(0)")
    k("s_barrier")
    for q in range(12):
        k(f"v_mov_b32 v{Sacc+q}, 0")
    k(f"ds_read_b128 v[{qf}:{qf+3}], v{vL16} offset:{Q_O}")
    k(f"ds_read_b128 v[{kmf}:{kmf+3}], v{vL16} offset:{K_O}")
    k("s_waitcnt vmcnt(0)")
    for ks in range(4):
        cur = 4 * (ks % 2)
        nxt = 4 - cur
        if ks < 3:
            k(f"ds_read_b128 v[{qf+nxt}:{qf+nxt+3}], v{vL16} offset:{Q_O + (ks+1)*1024}")
            k(f"ds_read_b128 v[{kmf+nxt}:{kmf+nxt+3}], v{vL16} offset:{K_O + (ks+1)*1024}")
            k("s_waitcnt lgkmcnt(2)")
        else:
            k("s_waitcnt lgkmcnt(0)")
        k(f"v_mfma_f32_16x16x32_bf16 v[{Sacc}:{Sacc+3}], v[{kmf+cur}:{kmf+cur+3}], v[{qf+cur}:{qf+cur+3}], v[{Sacc}:{Sacc+3}]")
        for T_ in range(2):
            b = R1 + (T_ * 4 + ks) * 4
            s = Sacc + 4 + 4 * T_
            k(f"v_mfma_f32_16x16x32_bf16 v[{s}:{s+3}], v[{b}:{b+3}], v[{qf+cur}:{qf+cur+3}], v[{s}:{s+3}]")
    k(f"ds_read_b64 v[{vmf}:{vmf+1}], v{vVTr}")
    k(f"ds_read_b64 v[{vmf+4}:{vmf+5}], v{vVTr} offset:512")
    k("s_nop 7")
    def bf_round_all():
        for q in range(6):
            k(f"v_cvt_pk_bf16_f32 v{tmp+q}, v{Sacc+2*q}, v{Sacc+2*q+1}")
        for q in range(6):
            k(f"v_lshlrev_b32 v{Sacc+2*q}, 16, v{tmp+q}")
            k(f"v_and_b32 v{Sacc+2*q+1}, 0xffff0000, v{tmp+q}")
    bf_round_all()
    for q in range(12):
        k(f"v_mul_f32 v{Sacc+q}, s32, v{Sacc+q}")
    bf_round_all()
    k(f"v_mov_b32 v{T}, 0xff800000")
    for r in range(4):
        k(f"v_cndmask_b32 v{Sacc+r}, v{T}, v{Sacc+r}, s[28:29]")
    k(f"v_max3_f32 v{T+1}, v{Sacc}, v{Sacc+1}, v{Sacc+2}")
    for q in range(3, 12, 2):
        if q + 1 < 12:
            k(f"v_max3_f32 v{T+1}, v{T+1}, v{Sacc+q}, v{Sacc+q+1}")
        else:
            k(f"v_max_f32 v{T+1}, v{T+1}, v{Sacc+q}")
    xmax(k, f"v{T+1}", f"v{T+2}", "v_max_f32")
    k(f"v_mul_f32 v{T+1}, s33, v{T+1}")
    for q in range(12):
        k(f"v_fma_f32 v{Sacc+q}, v{Sacc+q}, s33, -v{T+1}")
    for q in range(12):
        k(f"v_exp_f32 v{Sacc+q}, v{Sacc+q}")
    k("s_nop 0")
    k(f"v_add_f32 v{T+1}, v{Sacc}, v{Sacc+1}")
    for q in range(2, 12):
        k(f"v_add_f32 v{T+1}, v{T+1}, v{Sacc+q}")
    xmax(k, f"v{T+1}", f"v{T+2}", "v_add_f32")
    k(f"""
    v_rcp_f32 v{T+2}, v{T+1}
    s_nop 0
    v_fma_f32 v{T+3}, -v{T+1}, v{T+2}, 1.0
    v_fma_f32 v{T+2}, v{T+3}, v{T+2}, v{T+2}
    """)
    for q in range(12):
        k(f"v_mul_f32 v{Sacc+q}, v{Sacc+q}, v{T+2}")
    k(f"v_cvt_pk_bf16_f32 v{P}, v{Sacc+4}, v{Sacc+5}")
    k(f"v_cvt_pk_bf16_f32 v{P+1}, v{Sacc+6}, v{Sacc+7}")
    k(f"v_cvt_pk_bf16_f32 v{P+2}, v{Sacc+8}, v{Sacc+9}")
    k(f"v_cvt_pk_bf16_f32 v{P+3}, v{Sacc+10}, v{Sacc+11}")
    k(f"v_cvt_pk_bf16_f32 v{P+4}, v{Sacc}, v{Sacc+1}")
    k(f"v_cvt_pk_bf16_f32 v{P+5}, v{Sacc+2}, v{Sacc+3}")
    k(f"v_mov_b32 v{P+6}, 0")
    k(f"v_mov_b32 v{P+7}, 0")
    k("s_waitcnt lgkmcnt(0)")
    k("s_nop 1")
    for mt in range(2):
        o = Oacc + 4 * mt
        k(f"v_mfma_f32_16x16x32_bf16 v[{o}:{o+3}], v[{R2+4*mt}:{R2+4*mt+3}], v[{P}:{P+3}], 0")
        k(f"v_mfma_f32_16x16x32_bf16 v[{o}:{o+3}], v[{vmf+4*mt}:{vmf+4*mt+3}], v[{P+4}:{P+7}], v[{o}:{o+3}]")
    k("s_nop 7")
    k("s_nop 1")
    for mt in range(2):
        o = Oacc + 4 * mt
        k(f"v_cvt_pk_bf16_f32 v{tmp+2*mt}, v{o}, v{o+1}")
        k(f"v_cvt_pk_bf16_f32 v{tmp+2*mt+1}, v{o+2}, v{o+3}")
    k("s_mov_b64 exec, s[26:27]")
    k(f"ds_write_b64 v{vQw}, v[{tmp}:{tmp+1}] offset:{MEM_O}")
    k(f"ds_write_b64 v{vQw}, v[{tmp+2}:{tmp+3}] offset:{MEM_O+512}")
    k("s_mov_b64 exec, -1")
    k("s_waitcnt lgkmcnt(0)")
    k("s_barrier")
    acc3 = R1
    for q in range(32):
        k(f"v_mov_b32 v{acc3+q}, 0")
    k(f"ds_read_b128 v[{of}:{of+3}], v{vL16} offset:{MEM_O}")
    for ks in range(4):
        cur = 4 * (ks % 2)
        nxt = 4 - cur
        if ks < 3:
            k(f"ds_read_b128 v[{of+nxt}:{of+nxt+3}], v{vL16} offset:{MEM_O + (ks+1)*1024}")
        for dt in range(8):
            wb = wof + 4 * (dt % 4)
            k(f"ds_read_b128 v[{wb}:{wb+3}], v{vWo} offset:{(dt*4+ks)*1024}")
            if dt % 4 == 3:
                k("s_waitcnt lgkmcnt(0)")
                for d2 in range(dt - 3, dt + 1):
                    wb2 = wof + 4 * (d2 % 4)
                    a = acc3 + 4 * d2
                    k(f"v_mfma_f32_16x16x32_bf16 v[{a}:{a+3}], v[{of+cur}:{of+cur+3}], v[{wb2}:{wb2+3}], v[{a}:{a+3}]")
    k("s_nop 7")
    k("s_nop 3")
    k("s_mov_b64 exec, s[28:29]")
    for dt in range(8):
        for r in range(4):
            base = vAt1 if r >= 2 else vAt0
            k(f"buffer_atomic_add_f32 v{acc3+4*dt+r}, v{base}, s[4:7], s23 offen offset:{(r%2)*2048 + dt*64}")
    k("s_mov_b64 exec, -1")
    k("s_waitcnt vmcnt(0)")
    k("s_barrier")
    lnosig = k.lab("nosig")
    k(f"""
    s_cmp_eq_u32 s17, 0
    s_cbranch_scc0 {lnosig}
    s_and_b32 s34, s16, 7
    s_lshl_b32 s34, s34, 7
    s_add_u32 s34, s34, s24
    v_mov_b32 v{T}, 1
    v_mov_b32 v{T+1}, 0
    s_mov_b64 exec, 1
    buffer_atomic_add v{T}, v{T+1}, s[4:7], s34 offen
    s_mov_b64 exec, -1
    {lnosig}:
    s_add_u32 s18, s18, 1
    s_mov_b32 s37, s24
    s_mov_b32 s38, s23
    """)
    step_scalars()
    lpoll = k.lab("poll")
    k(f"""
    s_mov_b64 exec, 0xff
    {lpoll}:
    buffer_load_dword v{T}, v{vCnt}, s[4:7], s37 offen sc1
    s_waitcnt vmcnt(0)
    v_cmp_ne_u32 vcc, 4, v{T}
    s_cbranch_vccz {lpoll}_done
    s_sleep 1
    s_branch {lpoll}
    {lpoll}_done:
    s_mov_b64 exec, -1
    """)
    for i in range(4):
        k(f"buffer_load_dwordx4 v[{accrd+4*i}:{accrd+4*i+3}], v{vAccRd}, s[4:7], s38 offen offset:{i*1024} sc1")
    kv_prefetch()
    for i in range(4):
        b = accrd + 4 * i
        k(f"s_waitcnt vmcnt({12+3-i})")
        k(f"v_cvt_pk_bf16_f32 v{b}, v{b}, v{b+1}")
        k(f"v_cvt_pk_bf16_f32 v{b+1}, v{b+2}, v{b+3}")
        k(f"ds_write_b64 v{vMw}, v[{b}:{b+1}] offset:{(i&1)*8192 + (i>>1)*16}")
    k("s_waitcnt lgkmcnt(0)")
    k("s_barrier")
    k(f"s_branch {lloop}")
    k(f"{lfin}:")
    k("s_waitcnt vmcnt(0)")
    k(f"{lend}:")
    k("s_endpgm")
    return k
```

```python
from asmlib import *
import layout as L

ROWB = 144


def k_gemm(name, x_off, w_off, K, n_tiles, m_tiles, TM, TN, epi, decode):
    total = n_tiles * m_tiles
    BM = 64 * TM
    BN = 64 * TN
    XT = BM * ROWB
    WT = BN * ROWB
    STG = XT + WT
    k = Kern(name, (256, 1, 1), (total, 1, 1), lds=2 * STG)
    nsteps = K // 64
    assert nsteps % 2 == 0
    lend = k.lab("end")
    vXg = [8 + j for j in range(2 * TM)]
    vWg = [8 + 2 * TM + j for j in range(2 * TN)]
    nb = 8 + 2 * TM + 2 * TN
    vXl, vXr, vWr = nb, nb + 1, nb + 2
    vXl1, vXr1, vWr1 = nb + 3, nb + 4, nb + 5
    nb += 6
    nb = (nb + 3) // 4 * 4
    stX = [nb + 4 * j for j in range(2 * TM)]
    nb += 8 * TM
    stW = [nb + 4 * j for j in range(2 * TN)]
    nb += 8 * TN
    fr = []
    for s in range(2):
        xf = [nb + 4 * i for i in range(TM)]
        nb += 4 * TM
        wf = [nb + 4 * j for j in range(TN)]
        nb += 4 * TN
        fr.append((xf, wf))
    acc = {}
    for j in range(TN):
        for i in range(TM):
            acc[(j, i)] = nb
            nb += 16
    vtmp = nb
    nb += 12
    k.vgpr = nb
    k.sgpr = 40
    swapped_possible = (epi == 'blockB')

    k(f"""
    s_cmp_ge_u32 s2, {total}
    s_cbranch_scc1 {lend}
    s_load_dwordx2 s[4:5], s[0:1], {KARG['ws']}
    """)
    if epi == 'res':
        k(f"s_load_dwordx2 s[12:13], s[0:1], {KARG['out']}")
    decode(k)
    k(f"""
    v_and_b32 v1, 63, v0
    v_lshrrev_b32 v2, 6, v0
    v_and_b32 v3, 31, v0
    v_bfe_u32 v4, v0, 5, 1
    v_lshrrev_b32 v5, 3, v0
    v_and_b32 v6, 7, v0
    """)
    k(f"s_mul_i32 s18, s17, {BM * K * 2}")
    k(f"s_add_u32 s18, s18, 0x{x_off:x}")
    k(f"s_mul_i32 s19, s16, {BN * K * 2}")
    k(f"s_add_u32 s19, s19, 0x{w_off:x}")
    k(f"s_mov_b32 s20, {K * 2}")
    k(f"v_mul_lo_u32 v7, v5, s20")
    k(f"v_lshl_add_u32 v7, v6, 4, v7")
    for j in range(2 * TM):
        k(f"v_add_u32 v{vXg[j]}, s18, v7")
        if j:
            k(f"v_add_u32 v{vXg[j]}, 0x{32 * j * K * 2:x}, v{vXg[j]}")
    for j in range(2 * TN):
        k(f"v_add_u32 v{vWg[j]}, s19, v7")
        if j:
            k(f"v_add_u32 v{vWg[j]}, 0x{32 * j * K * 2:x}, v{vWg[j]}")
    k(f"s_movk_i32 s21, {ROWB}")
    k(f"v_mul_lo_u32 v{vXl}, v5, s21")
    k(f"v_lshl_add_u32 v{vXl}, v6, 4, v{vXl}")
    k(f"""
    v_lshrrev_b32 v7, 1, v2
    v_mul_u32_u24 v7, {32 * TM}, v7
    v_add_u32 v7, v7, v3
    v_mul_lo_u32 v{vXr}, v7, s21
    v_lshl_add_u32 v{vXr}, v4, 4, v{vXr}
    v_and_b32 v7, 1, v2
    v_mul_u32_u24 v7, {32 * TN}, v7
    v_add_u32 v7, v7, v3
    v_mul_lo_u32 v{vWr}, v7, s21
    v_lshl_add_u32 v{vWr}, v4, 4, v{vWr}
    v_add_u32 v{vWr}, {XT}, v{vWr}
    v_add_u32 v{vXl1}, {STG}, v{vXl}
    v_add_u32 v{vXr1}, {STG}, v{vXr}
    v_add_u32 v{vWr1}, {STG}, v{vWr}
    """)
    for key, r in acc.items():
        for q in range(16):
            k(f"v_mov_b32 v{r + q}, 0")
    k("s_waitcnt lgkmcnt(0)")
    k.srd_finish(4, WS_BYTES)
    if epi == 'res':
        k.srd_finish(12, 2048 * 512 * 2)

    def gloads():
        for j in range(2 * TM):
            k(f"buffer_load_dwordx4 v[{stX[j]}:{stX[j]+3}], v{vXg[j]}, s[4:7], s18 offen")
        for j in range(2 * TN):
            k(f"buffer_load_dwordx4 v[{stW[j]}:{stW[j]+3}], v{vWg[j]}, s[4:7], s18 offen")

    def lwrites(par):
        a = vXl1 if par else vXl
        for j in range(2 * TM):
            k(f"ds_write_b128 v{a}, v[{stX[j]}:{stX[j]+3}] offset:{32 * j * ROWB}")
        for j in range(2 * TN):
            k(f"ds_write_b128 v{a}, v[{stW[j]}:{stW[j]+3}] offset:{XT + 32 * j * ROWB}")

    def freads(par, kk, st):
        xf, wf = fr[st]
        ax = vXr1 if par else vXr
        aw = vWr1 if par else vWr
        for i in range(TM):
            k(f"ds_read_b128 v[{xf[i]}:{xf[i]+3}], v{ax} offset:{32 * i * ROWB + 32 * kk}")
        for j in range(TN):
            k(f"ds_read_b128 v[{wf[j]}:{wf[j]+3}], v{aw} offset:{32 * j * ROWB + 32 * kk}")

    def mfmas(st, swapped):
        xf, wf = fr[st]
        for j in range(TN):
            for i in range(TM):
                a = acc[(j, i)]
                if swapped:
                    k(f"v_mfma_f32_32x32x16_bf16 v[{a}:{a+15}], v[{xf[i]}:{xf[i]+3}], v[{wf[j]}:{wf[j]+3}], v[{a}:{a+15}]")
                else:
                    k(f"v_mfma_f32_32x32x16_bf16 v[{a}:{a+15}], v[{wf[j]}:{wf[j]+3}], v[{xf[i]}:{xf[i]+3}], v[{a}:{a+15}]")

    def kloop(swapped):
        lloop = k.lab("loop")
        k("s_mov_b32 s18, 0")
        gloads()
        k("s_waitcnt vmcnt(0)")
        lwrites(0)
        k("s_waitcnt lgkmcnt(0)")
        k("s_barrier")
        k("s_mov_b32 s22, 0")
        k(f"{lloop}:")
        for par in range(2):
            base = par
            nbase = 1 - par
            lsk = k.lab("skl")
            lsk2 = k.lab("sks")
            k("s_add_u32 s18, s18, 128")
            k(f"s_cmp_lt_u32 s22, {nsteps - 1 - par}")
            k(f"s_cbranch_scc0 {lsk}")
            gloads()
            k(f"{lsk}:")
            freads(base, 0, 0)
            for kk in range(4):
                if kk < 3:
                    freads(base, kk + 1, (kk + 1) % 2)
                    k(f"s_waitcnt lgkmcnt({TM + TN})")
                else:
                    k("s_waitcnt lgkmcnt(0)")
                mfmas(kk % 2, swapped)
            k(f"s_cmp_lt_u32 s22, {nsteps - 1 - par}")
            k(f"s_cbranch_scc0 {lsk2}")
            k("s_waitcnt vmcnt(0)")
            lwrites(nbase)
            k(f"{lsk2}:")
            k("s_waitcnt lgkmcnt(0)")
            k("s_barrier")
        k("s_add_u32 s22, s22, 2")
        k(f"s_cmp_lt_u32 s22, {nsteps}")
        k(f"s_cbranch_scc1 {lloop}")
        k("s_nop 15")

    ctx = dict(k=k, acc=acc, TM=TM, TN=TN, vtmp=vtmp, fr=fr, stX=stX, stW=stW)
    if epi == 'blockB':
        lsw = k.lab("swapped")
        k("s_cmp_ge_u32 s16, 64")
        k(f"s_cbranch_scc1 {lsw}")
        kloop(False)
        epi_blockB(ctx, False)
        k(f"s_branch {lend}")
        k(f"{lsw}:")
        kloop(True)
        epi_blockB(ctx, True)
    else:
        kloop(False)
        if epi == 'res':
            epi_res(ctx, BM, BN)
        elif epi == 'qkvA':
            epi_qkvA(ctx)
    k(f"{lend}:")
    k("s_endpgm")
    return k


def _wave_mn(k, TM, TN, dst_wm, dst_wn):
    k(f"v_lshrrev_b32 {dst_wm}, 1, v2")
    k(f"v_and_b32 {dst_wn}, 1, v2")


def epi_blockB(ctx, swapped):
    k, acc, TM, TN, vt = ctx['k'], ctx['acc'], ctx['TM'], ctx['TN'], ctx['vtmp']
    assert TM == 2 and TN == 2
    base = {0: L.QB, 1: L.KB}
    k(f"""
    v_lshrrev_b32 v{vt}, 1, v2
    v_and_b32 v{vt+1}, 1, v2
    s_and_b32 s24, s16, 31
    s_lshl_b32 s25, s17, 2
    """)
    if not swapped:
        k(f"""
        v_lshlrev_b32 v{vt+2}, 8, v3
        v_lshl_add_u32 v{vt+2}, v{vt+1}, 7, v{vt+2}
        v_lshl_add_u32 v{vt+2}, v4, 3, v{vt+2}
        v_lshl_add_u32 v{vt+2}, v{vt}, 19, v{vt+2}
        s_mov_b32 s26, 0x{L.QB:x}
        s_mov_b32 s27, 0x{L.KB:x}
        s_cmp_lt_u32 s16, 32
        s_cselect_b32 s26, s26, s27
        """)
    else:
        k(f"""
        v_lshlrev_b32 v{vt+2}, 6, v3
        v_lshl_add_u32 v{vt+2}, v{vt+1}, 12, v{vt+2}
        v_lshl_add_u32 v{vt+2}, v4, 3, v{vt+2}
        v_lshl_add_u32 v{vt+2}, v{vt}, 19, v{vt+2}
        s_mov_b32 s26, 0x{L.VBT:x}
        """)
    for i in range(2):
        k(f"s_add_u32 s{27+i}, s25, {i}")
        k(f"s_lshl_b32 s{27+i}, s{27+i}, 5")
        k(f"s_add_u32 s{27+i}, s{27+i}, s24")
        k(f"s_lshl_b32 s{27+i}, s{27+i}, 13")
        k(f"s_add_u32 s{27+i}, s{27+i}, s26")
    for j in range(2):
        for i in range(2):
            a = acc[(j, i)]
            for g4 in range(4):
                r = a + 4 * g4
                k(f"v_cvt_pk_bf16_f32 v{vt+4}, v{r}, v{r+1}")
                k(f"v_cvt_pk_bf16_f32 v{vt+5}, v{r+2}, v{r+3}")
                if not swapped:
                    imm = (32 * j + 8 * g4) * 2
                else:
                    imm = 2048 * j + 16 * g4
                k(f"buffer_store_dwordx2 v[{vt+4}:{vt+5}], v{vt+2}, s[4:7], s{27+i} offen offset:{imm}")
                k("s_nop 0")


def epi_res(ctx, BM, BN):
    k, acc, TM, TN, vt = ctx['k'], ctx['acc'], ctx['TM'], ctx['TN'], ctx['vtmp']
    stX, stW = ctx['stX'], ctx['stW']
    k(f"""
    v_lshrrev_b32 v{vt}, 1, v2
    v_and_b32 v{vt+1}, 1, v2
    s_mul_i32 s24, s17, {BM}
    v_mul_u32_u24 v{vt+2}, {32*TM}, v{vt}
    v_add3_u32 v{vt+2}, v{vt+2}, v3, s24
    v_lshlrev_b32 v{vt+2}, 10, v{vt+2}
    s_mul_i32 s25, s16, {BN*2}
    v_mul_u32_u24 v{vt+3}, {32*TN*2}, v{vt+1}
    v_add3_u32 v{vt+2}, v{vt+2}, v{vt+3}, s25
    v_lshl_add_u32 v{vt+2}, v4, 3, v{vt+2}
    s_mov_b32 s26, 0x{L.X:x}
    s_add_u32 s27, s26, 0x8000
    s_movk_i32 s28, 0
    s_mov_b32 s29, 0x8000
    """)
    dst = []
    pool = []
    for b in stX + stW:
        pool += [b, b + 2]
    for s in range(2):
        for b in ctx['fr'][s][0] + ctx['fr'][s][1]:
            pool += [b, b + 2]
    idx = 0
    plan = []
    for j in range(TN):
        for i in range(TM):
            for g4 in range(4):
                d = pool[idx]
                idx += 1
                imm = (32 * j + 8 * g4) * 2
                plan.append((j, i, g4, d, imm))
                k(f"buffer_load_dwordx2 v[{d}:{d+1}], v{vt+2}, s[4:7], s{26+i} offen offset:{imm}")
    n = len(plan)
    for t, (j, i, g4, d, imm) in enumerate(plan):
        r = acc[(j, i)] + 4 * g4
        k(f"s_waitcnt vmcnt({min(63, n - 1 - t + 2 * t)})") if False else None
        k(f"s_waitcnt vmcnt({n - 1 - t})") if t == 0 or True else None
        for q in range(4):
            k(f"v_cvt_pk_bf16_f32 v{r+q}, v{r+q}, v{r+q}")
            k(f"v_lshlrev_b32 v{r+q}, 16, v{r+q}")
        k(f"v_lshlrev_b32 v{vt+4}, 16, v{d}")
        k(f"v_and_b32 v{vt+5}, 0xffff0000, v{d}")
        k(f"v_lshlrev_b32 v{vt+6}, 16, v{d+1}")
        k(f"v_and_b32 v{vt+7}, 0xffff0000, v{d+1}")
        for q in range(4):
            k(f"v_add_f32 v{vt+4+q}, v{vt+4+q}, v{r+q}")
        k(f"v_cvt_pk_bf16_f32 v{d}, v{vt+4}, v{vt+5}")
        k(f"v_cvt_pk_bf16_f32 v{d+1}, v{vt+6}, v{vt+7}")
    for t, (j, i, g4, d, imm) in enumerate(plan):
        k(f"buffer_store_dwordx2 v[{d}:{d+1}], v{vt+2}, s[4:7], s{26+i} offen offset:{imm}")
        k(f"buffer_store_dwordx2 v[{d}:{d+1}], v{vt+2}, s[12:15], s{28+i} offen offset:{imm}")


def epi_qkvA(ctx):
    k, acc, TM, TN, vt = ctx['k'], ctx['acc'], ctx['TM'], ctx['TN'], ctx['vtmp']
    assert TM == 2 and TN == 2
    lkv = k.lab("kv")
    lend2 = k.lab("qend")
    k(f"""
    v_lshrrev_b32 v{vt}, 1, v2
    v_and_b32 v{vt+1}, 1, v2
    s_lshl_b32 s24, s17, 7
    v_lshlrev_b32 v{vt+2}, 6, v{vt}
    v_add3_u32 v{vt+2}, v{vt+2}, v3, s24          ; tok (i=0)
    s_cmp_eq_u32 s16, 4
    s_cbranch_scc1 {lkv}
    v_lshlrev_b32 v{vt+3}, 10, v{vt+2}
    s_lshl_b32 s25, s16, 8
    v_lshl_add_u32 v{vt+3}, v{vt+1}, 7, v{vt+3}
    v_lshl_add_u32 v{vt+3}, v4, 3, v{vt+3}
    v_add_u32 v{vt+3}, s25, v{vt+3}
    s_mov_b32 s26, 0x{L.QA:x}
    s_add_u32 s27, s26, 0x8000
    """)
    for j in range(2):
        for i in range(2):
            a = acc[(j, i)]
            for g4 in range(4):
                r = a + 4 * g4
                k(f"v_cvt_pk_bf16_f32 v{vt+4}, v{r}, v{r+1}")
                k(f"v_cvt_pk_bf16_f32 v{vt+5}, v{r+2}, v{r+3}")
                k(f"buffer_store_dwordx2 v[{vt+4}:{vt+5}], v{vt+3}, s[4:7], s{26+i} offen offset:{(32*j+8*g4)*2}")
                k("s_nop 0")
    k(f"s_branch {lend2}")
    k(f"{lkv}:")
    k(f"""
    v_readfirstlane_b32 s25, v{vt+1}
    s_nop 3
    s_cmp_eq_u32 s25, 0
    s_cbranch_scc0 {lend2}
    v_lshlrev_b32 v{vt+3}, 5, v{vt+2}
    v_lshl_add_u32 v{vt+3}, v4, 3, v{vt+3}
    s_mov_b32 s26, 0x{L.KA:x}
    s_add_u32 s27, s26, 0x400
    v_lshlrev_b32 v{vt+6}, 1, v{vt+2}
    v_lshl_add_u32 v{vt+6}, v4, 14, v{vt+6}
    s_mov_b32 s28, 0x{L.VAT:x}
    s_add_u32 s29, s28, 64
    """)
    for i in range(2):
        a = acc[(0, i)]
        for g4 in range(2):
            r = a + 4 * g4
            k(f"v_cvt_pk_bf16_f32 v{vt+4}, v{r}, v{r+1}")
            k(f"v_cvt_pk_bf16_f32 v{vt+5}, v{r+2}, v{r+3}")
            k(f"buffer_store_dwordx2 v[{vt+4}:{vt+5}], v{vt+3}, s[4:7], s{26+i} offen offset:{16*g4}")
            k("s_nop 0")
        for g4 in range(2, 4):
            r = a + 4 * g4
            for q in range(4):
                d = 8 * (g4 - 2) + q
                k(f"v_cvt_pk_bf16_f32 v{vt+4}, v{r+q}, v{r+q}")
                k(f"v_add_u32 v{vt+7}, 0x{d*4096:x}, v{vt+6}")
                k(f"buffer_store_short v{vt+4}, v{vt+7}, s[4:7], s{28+i} offen")
    k(f"{lend2}:")


def dec_g1(k):
    k("s_lshr_b32 s16, s2, 4")
    k("s_and_b32 s17, s2, 15")


def dec_g3(k):
    k("""
    s_and_b32 s16, s2, 7
    s_mul_i32 s16, s16, 12
    s_lshr_b32 s17, s2, 7
    s_add_u32 s16, s16, s17
    s_lshr_b32 s17, s2, 3
    s_and_b32 s17, s17, 15
    """)


def dec_res(k):
    k("""
    s_lshr_b32 s16, s2, 5
    s_lshr_b32 s17, s2, 3
    s_and_b32 s17, s17, 3
    s_lshl_b32 s17, s17, 3
    s_and_b32 s24, s2, 7
    s_add_u32 s17, s17, s24
    """)


def g1():
    return k_gemm("g1_kernel", L.HN, L.WT_AQKV, 512, 5, 16, 2, 2, 'qkvA', dec_g1)


def g2():
    return k_gemm("g2_kernel", L.OA, L.WT_AO, 512, 8, 32, 1, 1, 'res', dec_res)


def g3():
    return k_gemm("g3_kernel", L.HN, L.WT_BQKV, 512, 96, 16, 2, 2, 'blockB', dec_g3)


def g4():
    return k_gemm("g4_kernel", L.OB, L.WT_BO, 4096, 8, 32, 1, 1, 'res', dec_res)
```

```python
def _al(x, a=65536):
    return (x + a - 1) // a * a

_off = 0
def _alloc(n):
    global _off
    o = _off
    _off = _al(_off + n)
    return o

S = 2048
D = 512
WT_AQKV = _alloc(544 * 512 * 2)
WT_AO = _alloc(512 * 512 * 2)
WT_BQKV = _alloc(12288 * 512 * 2)
WT_BO = _alloc(512 * 4096 * 2)
X = _alloc(S * D * 2)
HN = _alloc(S * D * 2)
QA = _alloc(S * 512 * 2)
KA = _alloc(S * 16 * 2)
VAT = _alloc(16 * S * 2)
OA = _alloc(S * 512 * 2)
QB = _alloc(S * 4096 * 2)
KB = _alloc(S * 4096 * 2)
VBT = _alloc(S * 4096 * 2)
OB = _alloc(S * 4096 * 2)
KM = _alloc(64 * 32 * 8 * 128 * 2)
VMT = _alloc(64 * 32 * 128 * 8 * 2)
ACC = _alloc(64 * 8 * 512 * 4)
CNT = _alloc(64 * 8 * 128)
ZERO_LO = ACC
ZERO_BYTES = CNT + 64 * 8 * 128 - ACC
WS_USED = _off
```

```python
import sys, importlib
sys.path.insert(0, "dev")
from asmlib import *
import k_basic, k_gemm, k_attn, k_chain

KNAME = "interleave_layers__grouped_kv_mqa__memory_aug_recurrent_mem_tr__prompt"
ref = open(f"cdna_kernels/{KNAME}.s.ref").read().split("\n")
header = [l for l in ref if l.startswith(";") and "@launch" not in l and "Override launch" not in l and "grid=ceil" not in l]

def build(stage=99):
    kt = k_basic.k_transpose()
    kln = k_basic.k_ln()
    g1 = k_gemm.g1(); g2 = k_gemm.g2(); g3 = k_gemm.g3(); g4 = k_gemm.g4()
    aa = k_attn.k_attn_a()
    ch = k_chain.k_chain()
    ab = k_attn.k_attn_b()
    kernels = [kt, kln, g1, g2, g3, g4, aa, ch, ab]
    layer = [kln, g1, aa, g2, kln, g3, ch, ab, g4]
    launches = [kt] + layer + layer
    return emit_file(kernels, launches, header)

if __name__ == "__main__":
    out = sys.argv[1] if len(sys.argv) > 1 else f"cdna_kernels/{KNAME}.s"
    open(out, "w").write(build())
    print("wrote", out)
```

```python
from asmlib import *
import layout as L
import k_gemm

DIAG_STEP = 20
WO_L = 0
HI = 131072
MEM_O = 0
Q_O = 16384
K_O = 20480
VT_O = 24576
LDS_TOTAL = HI + 28672


def xmax(k, v, t, op):
    k(f"v_mov_b32 {t}, {v}")
    k("s_nop 1")
    k(f"v_permlane16_swap_b32 {v}, {t}")
    k(f"{op} {v}, {v}, {t}")
    k(f"v_mov_b32 {t}, {v}")
    k("s_nop 1")
    k(f"v_permlane32_swap_b32 {v}, {t}")
    k(f"{op} {v}, {v}, {t}")


def k_chain(diag=False):
    k = Kern("chain_kernel", (256, 1, 1), (256, 1, 1), lds=LDS_TOTAL)
    k.sgpr = 90 if diag else 48
    stamps = []
    def stamp(i):
        if not diag: return
        k(f"s_memtime s[{50+2*i}:{51+2*i}]")
        stamps.append(i)
    k.vgpr = 256
    k.agpr = 256
    lend = k.lab("end")
    vL16, vQw, vVTw, vVTr, vKMst, vVMst, vKx0, vKx1, vVx, vAt0, vAt1, vAccRd, vMw, vCnt, vWo = range(4, 19)
    R1 = 20
    R2 = 52
    R3 = 60
    acc1 = R3
    memB = R3 + 24
    qf = R3
    kmf = R3 + 8
    Sacc = R3 + 16
    of = R3
    wof = R3 + 8
    R4 = 92
    tmp = R4
    P = R4 + 8
    vmf = R4 + 16
    Oacc = R4 + 24
    accrd = R4
    T = 124

    def wfrag(nt, ks):
        idx = nt * 16 + ks
        if idx < 64:
            return f"a[{4*idx}:{4*idx+3}]"
        return f"v[{128 + 4*(idx-64)}:{128 + 4*(idx-64)+3}]"

    lwork = k.lab("work")
    k(f"""
    s_cmp_ge_u32 s2, 256
    s_cbranch_scc1 {lend}
    s_load_dwordx2 s[4:5], s[0:1], {KARG['ws']}
    s_load_dwordx2 s[8:9], s[0:1], {KARG['B_mem0']}
    s_getreg_b32 s16, hwreg(HW_REG_XCC_ID)
    v_and_b32 v1, 63, v0
    v_lshrrev_b32 v{T}, 6, v0
    v_and_b32 v2, 15, v0
    v_bfe_u32 v3, v0, 4, 2
    s_nop 0
    v_readfirstlane_b32 s17, v{T}
    s_mov_b32 s26, 0x00ff00ff
    s_mov_b32 s27, 0x00ff00ff
    s_mov_b32 s28, -1
    s_mov_b32 s29, 0
    s_mov_b32 s32, 0x3db504f3
    s_mov_b32 s33, 0x3fb8aa3b
    s_waitcnt lgkmcnt(0)
    """)
    k.srd_finish(4, WS_BYTES)
    k.srd_finish(8, 8 * 512 * 2)
    k(f"""
    s_and_b32 s16, s16, 7
    s_cmp_eq_u32 s17, 0
    s_cbranch_scc0 {lend}_tk
    s_lshl_b32 s34, s16, 7
    s_add_u32 s34, s34, 0x{L.TK:x}
    v_mov_b32 v{T}, 1
    v_mov_b32 v{T+1}, 0
    s_mov_b64 exec, 1
    buffer_atomic_add v{T}, v{T+1}, s[4:7], s34 offen sc0
    s_waitcnt vmcnt(0)
    v_mov_b32 v{T+1}, 0x{HI:x}
    ds_write_b32 v{T+1}, v{T}
    s_mov_b64 exec, -1
    {lend}_tk:
    s_waitcnt lgkmcnt(0)
    s_barrier
    v_mov_b32 v{T+1}, 0x{HI:x}
    ds_read_b32 v{T}, v{T+1}
    s_waitcnt lgkmcnt(0)
    v_readfirstlane_b32 s35, v{T}
    s_barrier
    s_cmp_lg_u32 s16, 0
    s_cbranch_scc1 {lwork}
    s_cmp_ge_u32 s35, 32
    s_cbranch_scc1 {lwork}
    s_mov_b32 s16, s35
    """)
    k(f"""
    v_lshlrev_b32 v{vL16}, 4, v1
    v_add_u32 v{vL16}, 0x{HI:x}, v{vL16}
    v_lshrrev_b32 v{T}, 1, v3
    v_lshlrev_b32 v{vQw}, 8, v{T}
    v_lshl_add_u32 v{vQw}, v2, 4, v{vQw}
    v_and_b32 v{T}, 1, v3
    v_lshl_add_u32 v{vQw}, v{T}, 3, v{vQw}
    s_lshl_b32 s34, s17, 10
    s_add_u32 s34, s34, 0x{HI:x}
    v_add_u32 v{vQw}, s34, v{vQw}
    v_lshlrev_b32 v{vVTw}, 7, v3
    v_lshl_add_u32 v{vVTw}, v2, 1, v{vVTw}
    s_add_u32 s35, s34, {VT_O}
    v_add_u32 v{vVTw}, s35, v{vVTw}
    v_lshlrev_b32 v{vVTr}, 5, v2
    v_lshl_add_u32 v{vVTr}, v3, 3, v{vVTr}
    v_add_u32 v{vVTr}, s35, v{vVTr}
    ; vKMst = t*256 + (32w + 4g)*2
    v_lshlrev_b32 v{vKMst}, 8, v2
    v_lshl_add_u32 v{vKMst}, v3, 3, v{vKMst}
    s_lshl_b32 s34, s17, 6
    v_add_u32 v{vKMst}, s34, v{vKMst}
    ; vVMst = (32w + 4g)*16 + t*2
    v_lshlrev_b32 v{vVMst}, 6, v3
    v_lshl_add_u32 v{vVMst}, v2, 1, v{vVMst}
    s_lshl_b32 s34, s17, 9
    v_add_u32 v{vVMst}, s34, v{vVMst}
    v_lshlrev_b32 v{vKx0}, 8, v2
    v_lshl_add_u32 v{vKx0}, v3, 4, v{vKx0}
    v_add_u32 v{vKx1}, 0x1000, v{vKx0}
    ; vVx = (32w + t16)*64 + g*8
    v_lshlrev_b32 v{vVx}, 6, v2
    v_lshl_add_u32 v{vVx}, v3, 3, v{vVx}
    s_lshl_b32 s34, s17, 11
    v_add_u32 v{vVx}, s34, v{vVx}
    v_and_b32 v{T}, 1, v3
    v_lshlrev_b32 v{vAt0}, 8, v{T}
    v_lshrrev_b32 v{T}, 1, v3
    v_lshl_add_u32 v{vAt0}, v{T}, 11, v{vAt0}
    v_lshl_add_u32 v{vAt0}, v2, 2, v{vAt0}
    s_lshl_b32 s34, s17, 12
    v_add_u32 v{vAt0}, s34, v{vAt0}
    v_lshrrev_b32 v{T}, 5, v1
    v_lshlrev_b32 v{vAt1}, 14, v{T}
    v_and_b32 v{T}, 31, v1
    v_lshl_add_u32 v{vAt1}, v{T}, 4, v{vAt1}
    v_lshlrev_b32 v{vAccRd}, 4, v0
    v_lshrrev_b32 v{T}, 5, v0                  ; ks = r>>1
    v_lshlrev_b32 v{vMw}, 10, v{T}
    v_bfe_u32 v{T}, v0, 4, 1                   ; r&1
    v_lshl_add_u32 v{vMw}, v{T}, 9, v{vMw}     ; g = (r&1)*2 + half -> *256
    v_and_b32 v{T}, 1, v0
    v_lshl_add_u32 v{vMw}, v{T}, 8, v{vMw}
    v_bfe_u32 v{T}, v0, 1, 3                   ; t
    v_lshl_add_u32 v{vMw}, v{T}, 4, v{vMw}
    v_add_u32 v{vMw}, 0x{HI:x}, v{vMw}
    v_lshlrev_b32 v{vCnt}, 2, v1
    v_lshlrev_b32 v{vWo}, 4, v1
    s_lshl_b32 s34, s17, 15
    v_add_u32 v{vWo}, s34, v{vWo}
    """)
    k(f"""
    v_mov_b32 v{T}, 0
    v_mov_b32 v{T+1}, 0
    v_mov_b32 v{T+2}, 0
    v_mov_b32 v{T+3}, 0
    v_lshlrev_b32 v{tmp}, 4, v0
    v_add_u32 v{tmp}, 0x{HI:x}, v{tmp}
    """)
    for i in range(7):
        k(f"ds_write_b128 v{tmp}, v[{T}:{T+3}] offset:{i*4096}")
    k(f"""
    ; voff = (32w + t16)*1024 + g*16
    v_lshlrev_b32 v{tmp+1}, 10, v2
    v_lshl_add_u32 v{tmp+1}, v3, 4, v{tmp+1}
    s_lshl_b32 s34, s17, 15
    v_add_u32 v{tmp+1}, s34, v{tmp+1}
    s_lshl_b32 s35, s16, 17            ; h*128*1024
    s_add_u32 s35, s35, 0x{L.WT_BQKV:x}
    """)
    for nt in range(6):
        mat = nt // 2
        k(f"s_add_u32 s36, s35, 0x{mat*4096*1024 + (nt%2)*16*1024:x}")
        for ks in range(16):
            k(f"buffer_load_dwordx4 {wfrag(nt, ks)}, v{tmp+1}, s[4:7], s36 offen offset:{ks*64}")
        k("s_waitcnt vmcnt(0)")
    k(f"""
    ; voff = t16*8192 + g*16
    v_lshlrev_b32 v{tmp+1}, 13, v2
    v_lshl_add_u32 v{tmp+1}, v3, 4, v{tmp+1}
    s_lshl_b32 s34, s17, 20            ; 128w*8192
    s_lshl_b32 s35, s16, 8             ; h*256
    s_add_u32 s34, s34, s35
    s_add_u32 s34, s34, 0x{L.WT_BO:x}
    """)
    for dt in range(8):
        k(f"s_add_u32 s36, s34, 0x{dt*16*8192:x}")
        for ks in range(4):
            k(f"buffer_load_dwordx4 v[{R3+4*ks}:{R3+4*ks+3}], v{tmp+1}, s[4:7], s36 offen offset:{ks*64}")
        k("s_waitcnt vmcnt(0)")
        for ks in range(4):
            k(f"ds_write_b128 v{vWo}, v[{R3+4*ks}:{R3+4*ks+3}] offset:{(dt*4+ks)*1024}")
    k(f"""
    s_waitcnt lgkmcnt(0)
    s_barrier
    v_lshlrev_b32 v{tmp}, 4, v0
    buffer_load_dwordx4 v[{R3}:{R3+3}], v{tmp}, s[8:11], 0 offen
    v_add_u32 v{tmp}, 0x1000, v{tmp}
    buffer_load_dwordx4 v[{R3+4}:{R3+7}], v{tmp}, s[8:11], 0 offen
    v_bfe_u32 v{tmp+1}, v0, 2, 4
    v_lshlrev_b32 v{tmp+1}, 10, v{tmp+1}
    v_and_b32 v{tmp+2}, 3, v0
    v_lshl_add_u32 v{tmp+1}, v{tmp+2}, 8, v{tmp+1}
    v_lshrrev_b32 v{tmp+2}, 6, v0
    v_lshl_add_u32 v{tmp+1}, v{tmp+2}, 4, v{tmp+1}
    v_add_u32 v{tmp+1}, 0x{HI:x}, v{tmp+1}
    s_waitcnt vmcnt(1)
    ds_write_b128 v{tmp+1}, v[{R3}:{R3+3}]
    s_waitcnt vmcnt(0)
    ds_write_b128 v{tmp+1}, v[{R3+4}:{R3+7}] offset:64
    """)
    for r in (vmf + 2, vmf + 3, vmf + 6, vmf + 7, P + 6, P + 7):
        k(f"v_mov_b32 v{r}, 0")

    def step_scalars():
        k(f"""
        s_lshl_b32 s34, s18, 5
        s_add_u32 s34, s34, s16
        s_lshl_b32 s35, s34, 13
        s_add_u32 s19, s35, 0x{L.KB:x}
        s_add_u32 s20, s35, 0x{L.VBT:x}
        s_lshl_b32 s35, s34, 11
        s_add_u32 s21, s35, 0x{L.KM:x}
        s_add_u32 s22, s35, 0x{L.VMT:x}
        s_and_b32 s35, s18, 1
        s_lshl_b32 s23, s35, 19             ; parity*512K
        s_add_u32 s23, s23, 0x{L.PBUF:x}
        s_mov_b32 s24, s23
        s_lshl_b32 s36, s16, 9
        s_add_u32 s24, s24, s36
        s_lshl_b32 s36, s16, 14
        s_add_u32 s23, s23, s36             ; + h*16384
        s_lshl_b32 s39, s35, 13             ; parity*8K
        s_add_u32 s39, s39, 0x{L.MBUF:x}
        """)

    def kv_prefetch():
        for T_ in range(2):
            for ks in range(4):
                b = R1 + (T_ * 4 + ks) * 4
                k(f"buffer_load_dwordx4 v[{b}:{b+3}], v{vKx1 if T_ else vKx0}, s[4:7], s19 offen offset:{ks*64}")
        for mt in range(2):
            b = R2 + 4 * mt
            k(f"buffer_load_dwordx2 v[{b}:{b+1}], v{vVx}, s[4:7], s20 offen offset:{mt*1024}")
            k(f"buffer_load_dwordx2 v[{b+2}:{b+3}], v{vVx}, s[4:7], s20 offen offset:{mt*1024+32}")

    k("s_mov_b32 s18, 0")
    step_scalars()
    kv_prefetch()
    k("s_waitcnt lgkmcnt(0)")
    k("s_barrier")
    lloop = k.lab("step")
    k(f"{lloop}:")
    stamp(0)
    for q in range(24):
        k(f"v_mov_b32 v{acc1+q}, 0")
    k(f"ds_read_b128 v[{memB}:{memB+3}], v{vL16} offset:{MEM_O}")
    k(f"ds_read_b128 v[{memB+4}:{memB+7}], v{vL16} offset:{MEM_O+1024}")
    for ks in range(16):
        b = memB + 4 * (ks % 2)
        k(f"s_waitcnt lgkmcnt({1 if ks < 15 else 0})")
        for nt in range(6):
            a = acc1 + 4 * nt
            k(f"v_mfma_f32_16x16x32_bf16 v[{a}:{a+3}], {wfrag(nt, ks)}, v[{b}:{b+3}], v[{a}:{a+3}]")
        if ks + 2 < 16:
            k(f"ds_read_b128 v[{b}:{b+3}], v{vL16} offset:{MEM_O + (ks+2)*1024}")
    k("s_nop 7")
    k("s_nop 3")
    stamp(1)
    for nt in range(6):
        a = acc1 + 4 * nt
        k(f"v_cvt_pk_bf16_f32 v{tmp+2*(nt%2)}, v{a}, v{a+1}")
        k(f"v_cvt_pk_bf16_f32 v{tmp+2*(nt%2)+1}, v{a+2}, v{a+3}")
        if nt % 2 == 1:
            mat = nt // 2
            k("s_mov_b64 exec, s[26:27]")
            if mat < 2:
                reg = Q_O if mat == 0 else K_O
                k(f"ds_write_b64 v{vQw}, v[{tmp}:{tmp+1}] offset:{reg}")
                k(f"ds_write_b64 v{vQw}, v[{tmp+2}:{tmp+3}] offset:{reg+512}")
                if mat == 1:
                    k(f"buffer_store_dwordx2 v[{tmp}:{tmp+1}], v{vKMst}, s[4:7], s21 offen")
                    k(f"buffer_store_dwordx2 v[{tmp+2}:{tmp+3}], v{vKMst}, s[4:7], s21 offen offset:32")
            else:
                for mt in range(2):
                    for r in range(4):
                        src = tmp + 2 * mt + r // 2
                        hi = "_d16_hi" if r % 2 else ""
                        k(f"ds_write_b16{hi} v{vVTw}, v{src} offset:{mt*512 + r*32}")
                        k(f"buffer_store_short{hi} v{src}, v{vVMst}, s[4:7], s22 offen offset:{mt*256 + r*16}")
            k("s_mov_b64 exec, -1")
    lfin = k.lab("fin")
    k("s_cmp_eq_u32 s18, 63")
    k(f"s_cbranch_scc1 {lfin}")
    k("s_waitcnt lgkmcnt(0)")
    k("s_barrier")
    stamp(2)
    for q in range(12):
        k(f"v_mov_b32 v{Sacc+q}, 0")
    k(f"ds_read_b128 v[{qf}:{qf+3}], v{vL16} offset:{Q_O}")
    k(f"ds_read_b128 v[{kmf}:{kmf+3}], v{vL16} offset:{K_O}")
    k("s_waitcnt vmcnt(0)")
    for ks in range(4):
        cur = 4 * (ks % 2)
        nxt = 4 - cur
        if ks < 3:
            k(f"ds_read_b128 v[{qf+nxt}:{qf+nxt+3}], v{vL16} offset:{Q_O + (ks+1)*1024}")
            k(f"ds_read_b128 v[{kmf+nxt}:{kmf+nxt+3}], v{vL16} offset:{K_O + (ks+1)*1024}")
            k("s_waitcnt lgkmcnt(2)")
        else:
            k("s_waitcnt lgkmcnt(0)")
        k(f"v_mfma_f32_16x16x32_bf16 v[{Sacc}:{Sacc+3}], v[{kmf+cur}:{kmf+cur+3}], v[{qf+cur}:{qf+cur+3}], v[{Sacc}:{Sacc+3}]")
        for T_ in range(2):
            b = R1 + (T_ * 4 + ks) * 4
            s = Sacc + 4 + 4 * T_
            k(f"v_mfma_f32_16x16x32_bf16 v[{s}:{s+3}], v[{b}:{b+3}], v[{qf+cur}:{qf+cur+3}], v[{s}:{s+3}]")
    k(f"ds_read_b64 v[{vmf}:{vmf+1}], v{vVTr}")
    k(f"ds_read_b64 v[{vmf+4}:{vmf+5}], v{vVTr} offset:512")
    k("s_nop 7")
    def bf_round_all():
        for q in range(6):
            k(f"v_cvt_pk_bf16_f32 v{tmp+q}, v{Sacc+2*q}, v{Sacc+2*q+1}")
        for q in range(6):
            k(f"v_lshlrev_b32 v{Sacc+2*q}, 16, v{tmp+q}")
            k(f"v_and_b32 v{Sacc+2*q+1}, 0xffff0000, v{tmp+q}")
    bf_round_all()
    for q in range(12):
        k(f"v_mul_f32 v{Sacc+q}, s32, v{Sacc+q}")
    bf_round_all()
    k(f"v_mov_b32 v{T}, 0xff800000")
    for r in range(4):
        k(f"v_cndmask_b32 v{Sacc+r}, v{T}, v{Sacc+r}, s[28:29]")
    k(f"v_max3_f32 v{T+1}, v{Sacc}, v{Sacc+1}, v{Sacc+2}")
    for q in range(3, 12, 2):
        if q + 1 < 12:
            k(f"v_max3_f32 v{T+1}, v{T+1}, v{Sacc+q}, v{Sacc+q+1}")
        else:
            k(f"v_max_f32 v{T+1}, v{T+1}, v{Sacc+q}")
    xmax(k, f"v{T+1}", f"v{T+2}", "v_max_f32")
    k(f"v_mul_f32 v{T+1}, s33, v{T+1}")
    for q in range(12):
        k(f"v_fma_f32 v{Sacc+q}, v{Sacc+q}, s33, -v{T+1}")
    for q in range(12):
        k(f"v_exp_f32 v{Sacc+q}, v{Sacc+q}")
    k("s_nop 0")
    k(f"v_add_f32 v{T+1}, v{Sacc}, v{Sacc+1}")
    for q in range(2, 12):
        k(f"v_add_f32 v{T+1}, v{T+1}, v{Sacc+q}")
    xmax(k, f"v{T+1}", f"v{T+2}", "v_add_f32")
    k(f"""
    v_rcp_f32 v{T+2}, v{T+1}
    s_nop 0
    v_fma_f32 v{T+3}, -v{T+1}, v{T+2}, 1.0
    v_fma_f32 v{T+2}, v{T+3}, v{T+2}, v{T+2}
    """)
    for q in range(12):
        k(f"v_mul_f32 v{Sacc+q}, v{Sacc+q}, v{T+2}")
    k(f"v_cvt_pk_bf16_f32 v{P}, v{Sacc+4}, v{Sacc+5}")
    k(f"v_cvt_pk_bf16_f32 v{P+1}, v{Sacc+6}, v{Sacc+7}")
    k(f"v_cvt_pk_bf16_f32 v{P+2}, v{Sacc+8}, v{Sacc+9}")
    k(f"v_cvt_pk_bf16_f32 v{P+3}, v{Sacc+10}, v{Sacc+11}")
    k(f"v_cvt_pk_bf16_f32 v{P+4}, v{Sacc}, v{Sacc+1}")
    k(f"v_cvt_pk_bf16_f32 v{P+5}, v{Sacc+2}, v{Sacc+3}")
    k(f"v_mov_b32 v{P+6}, 0")
    k(f"v_mov_b32 v{P+7}, 0")
    for r_ in (vmf + 2, vmf + 3, vmf + 6, vmf + 7):
        k(f"v_mov_b32 v{r_}, 0")
    k("s_waitcnt lgkmcnt(0)")
    k("s_nop 1")
    for mt in range(2):
        o = Oacc + 4 * mt
        k(f"v_mfma_f32_16x16x32_bf16 v[{o}:{o+3}], v[{R2+4*mt}:{R2+4*mt+3}], v[{P}:{P+3}], 0")
        k(f"v_mfma_f32_16x16x32_bf16 v[{o}:{o+3}], v[{vmf+4*mt}:{vmf+4*mt+3}], v[{P+4}:{P+7}], v[{o}:{o+3}]")
    k("s_nop 7")
    k("s_nop 1")
    stamp(3)
    for mt in range(2):
        o = Oacc + 4 * mt
        k(f"v_cvt_pk_bf16_f32 v{tmp+2*mt}, v{o}, v{o+1}")
        k(f"v_cvt_pk_bf16_f32 v{tmp+2*mt+1}, v{o+2}, v{o+3}")
    k("s_mov_b64 exec, s[26:27]")
    k(f"ds_write_b64 v{vQw}, v[{tmp}:{tmp+1}] offset:{MEM_O}")
    k(f"ds_write_b64 v{vQw}, v[{tmp+2}:{tmp+3}] offset:{MEM_O+512}")
    k("s_mov_b64 exec, -1")
    k("s_waitcnt lgkmcnt(0)")
    k("s_barrier")
    stamp(4)
    acc3 = R1
    for q in range(32):
        k(f"v_mov_b32 v{acc3+q}, 0")
    ofa = R3
    wofr = R3 + 16
    for ks in range(4):
        k(f"ds_read_b128 v[{ofa+4*ks}:{ofa+4*ks+3}], v{vL16} offset:{MEM_O + ks*1024}")
    order = [(dt, ks) for dt in range(8) for ks in range(4)]
    for i in range(4):
        dt, ks = order[i]
        k(f"ds_read_b128 v[{wofr+4*i}:{wofr+4*i+3}], v{vWo} offset:{(dt*4+ks)*1024}")
    for i, (dt, ks) in enumerate(order):
        slot = wofr + 4 * (i % 4)
        k(f"s_waitcnt lgkmcnt({min(3, len(order)-1-i)})")
        a = acc3 + 4 * dt
        k(f"v_mfma_f32_16x16x32_bf16 v[{a}:{a+3}], v[{ofa+4*ks}:{ofa+4*ks+3}], v[{slot}:{slot+3}], v[{a}:{a+3}]")
        if i + 4 < len(order):
            d2, k2 = order[i + 4]
            k(f"ds_read_b128 v[{slot}:{slot+3}], v{vWo} offset:{(d2*4+k2)*1024}")
    k("s_nop 7")
    k("s_nop 3")
    stamp(5)
    for dt in range(4):
        for r in range(4):
            k(f"v_permlane32_swap_b32 v{acc3+4*dt+r}, v{acc3+4*(dt+4)+r}")
    for dt in range(4):
        for r in range(4):
            k(f"buffer_store_dword v{acc3+4*dt+r}, v{vAt0}, s[4:7], s23 offen offset:{dt*512 + r*64}")
    stamp(6)
    k("s_waitcnt vmcnt(0)")
    stamp(7)
    k("s_barrier")
    stamp(8)
    lnot0 = k.lab("not0")
    lp1 = k.lab("p1")
    lp2 = k.lab("p2")
    red = R3
    k(f"""
    s_add_u32 s37, s18, 1
    s_mov_b32 s38, s24
    s_mov_b32 s40, s39
    s_cmp_eq_u32 s17, 0
    s_cbranch_scc0 {lnot0}
    v_mov_b32 v{T}, s37
    v_mov_b32 v{T+1}, s16
    v_lshlrev_b32 v{T+1}, 2, v{T+1}
    s_mov_b32 s34, 0x{L.FLAG1:x}
    s_mov_b64 exec, 1
    buffer_store_dword v{T}, v{T+1}, s[4:7], s34 offen
    s_mov_b64 exec, s[28:29]
    {lp1}:
    buffer_load_dword v{T+2}, v{vCnt}, s[4:7], s34 offen sc1
    s_waitcnt vmcnt(0)
    v_cmp_gt_u32 vcc, s37, v{T+2}
    s_cbranch_vccnz {lp1}
    s_mov_b64 exec, -1
    """)
    stamp(9)
    for i in range(16):
        k(f"buffer_load_dwordx4 v[{red+4*i}:{red+4*i+3}], v{vAt1}, s[4:7], s38 offen sc1")
        if i < 15:
            k("s_add_u32 s38, s38, 0x8000")
    for i in range(1, 16):
        k(f"s_waitcnt vmcnt({15-i})")
        for q in range(4):
            k(f"v_add_f32 v{red+q}, v{red+q}, v{red+4*i+q}")
    for q in range(4):
        k(f"v_mov_b32 v{red+4+q}, v{red+q}")
    k("s_nop 1")
    for q in range(4):
        k(f"v_permlane32_swap_b32 v{red+q}, v{red+4+q}")
    for q in range(4):
        k(f"v_add_f32 v{red+q}, v{red+q}, v{red+4+q}")
    k(f"""
    v_cvt_pk_bf16_f32 v{red+4}, v{red}, v{red+1}
    v_cvt_pk_bf16_f32 v{red+5}, v{red+2}, v{red+3}
    v_lshlrev_b32 v{T+2}, 3, v1
    s_lshl_b32 s34, s16, 8
    s_add_u32 s34, s34, s40
    s_mov_b64 exec, s[28:29]
    buffer_store_dwordx2 v[{red+4}:{red+5}], v{T+2}, s[4:7], s34 offen
    s_waitcnt vmcnt(0)
    s_mov_b32 s34, 0x{L.FLAG2:x}
    s_mov_b64 exec, 1
    buffer_store_dword v{T}, v{T+1}, s[4:7], s34 offen
    s_mov_b64 exec, s[28:29]
    {lp2}:
    buffer_load_dword v{T+2}, v{vCnt}, s[4:7], s34 offen sc1
    s_waitcnt vmcnt(0)
    v_cmp_gt_u32 vcc, s37, v{T+2}
    s_cbranch_vccnz {lp2}
    s_mov_b64 exec, -1
    {lnot0}:
    s_add_u32 s18, s18, 1
    """)
    step_scalars()
    k("s_barrier")
    stamp(10)
    k(f"buffer_load_dwordx4 v[{red}:{red+3}], v{vAccRd}, s[4:7], s40 offen sc1")
    k(f"v_add_u32 v{T+3}, 0x1000, v{vAccRd}")
    k(f"buffer_load_dwordx4 v[{red+4}:{red+7}], v{T+3}, s[4:7], s40 offen sc1")
    k("s_waitcnt vmcnt(1)")
    k(f"ds_write_b128 v{vMw}, v[{red}:{red+3}]")
    k("s_waitcnt vmcnt(0)")
    k(f"ds_write_b128 v{vMw}, v[{red+4}:{red+7}] offset:8192")
    stamp(11)
    kv_prefetch()
    k("s_waitcnt lgkmcnt(0)")
    stamp(12)
    k("s_barrier")
    stamp(13)
    if diag:
        lnod = k.lab("nodiag")
        k(f"""
        s_cmp_eq_u32 s18, {DIAG_STEP+1}
        s_cbranch_scc0 {lnod}
        s_or_b32 s34, s16, s17
        s_cmp_eq_u32 s34, 0
        s_cbranch_scc0 {lnod}
        s_load_dwordx2 s[44:45], s[0:1], {KARG['dbg']}
        s_waitcnt lgkmcnt(0)
        s_and_b32 s45, s45, 0xffff
        s_movk_i32 s46, 256
        s_mov_b32 s47, 0x00020000
        s_mov_b64 exec, 1
        """)
        for i in range(16):
            k(f"v_mov_b32 v{T}, s{50+2*i}")
            k(f"v_mov_b32 v{T+1}, {4*i}")
            k(f"buffer_store_dword v{T}, v{T+1}, s[44:47], 0 offen")
        k("s_mov_b64 exec, -1")
        k(f"{lnod}:")
    k(f"s_branch {lloop}")
    k.lines = [ln for ln in k.lines if not ln.strip().startswith("STAMP")] if not diag else [
        (f"  s_memtime s[{50+2*int(ln.strip()[5:])}:{51+2*int(ln.strip()[5:])}]" if ln.strip().startswith("STAMP") else ln) for ln in k.lines]
    k(f"{lfin}:")
    k("s_waitcnt vmcnt(0)")
    k(f"s_branch {lend}")
    k(f"{lwork}:")
    lwl = k.lab("wloop")
    k(f"""
    s_cmp_eq_u32 s17, 0
    s_cbranch_scc0 {lwork}_w
    v_mov_b32 v{T}, 1
    v_mov_b32 v{T+1}, 0
    s_mov_b32 s34, 0x{L.WK:x}
    s_mov_b64 exec, 1
    buffer_atomic_add v{T}, v{T+1}, s[4:7], s34 offen sc0
    s_waitcnt vmcnt(0)
    v_mov_b32 v{T+1}, 0x{HI:x}
    ds_write_b32 v{T+1}, v{T}
    s_mov_b64 exec, -1
    {lwork}_w:
    s_waitcnt lgkmcnt(0)
    s_barrier
    v_mov_b32 v{T+1}, 0x{HI:x}
    ds_read_b32 v{T}, v{T+1}
    s_waitcnt lgkmcnt(0)
    v_readfirstlane_b32 s44, v{T}
    {lwl}:
    s_cmp_ge_u32 s44, 512
    s_cbranch_scc1 {lend}
    s_lshr_b32 s16, s44, 4
    s_and_b32 s17, s44, 15
    s_barrier
    """)
    k_gemm.gemm_tile(k, L.HN, L.WT_BQKV, 512, 2, 2, 'blockQ')
    k("s_waitcnt vmcnt(0)")
    k("s_add_u32 s44, s44, 224")
    k(f"s_branch {lwl}")
    k(f"{lend}:")
    k("s_endpgm")
    return k
```

```python
from asmlib import *
import layout as L

ROWB = 144


def k_gemm(name, x_off, w_off, K, n_tiles, m_tiles, TM, TN, epi, decode):
    total = n_tiles * m_tiles
    STG = (64 * TM + 64 * TN) * ROWB
    k = Kern(name, (256, 1, 1), (total, 1, 1), lds=2 * STG)
    lend = k.lab("end")
    k(f"""
    s_cmp_ge_u32 s2, {total}
    s_cbranch_scc1 {lend}
    s_load_dwordx2 s[4:5], s[0:1], {KARG['ws']}
    """)
    if epi == 'res':
        k(f"s_load_dwordx2 s[12:13], s[0:1], {KARG['out']}")
    decode(k)
    k("s_waitcnt lgkmcnt(0)")
    k.srd_finish(4, WS_BYTES)
    if epi == 'res':
        k.srd_finish(12, 2048 * 512 * 2)
    k.vgpr = gemm_tile(k, x_off, w_off, K, TM, TN, epi)
    k.sgpr = 40
    k(f"{lend}:")
    k("s_endpgm")
    return k


def gemm_tile(k, x_off, w_off, K, TM, TN, epi):
    BM = 64 * TM
    BN = 64 * TN
    XT = BM * ROWB
    WT = BN * ROWB
    STG = XT + WT
    nsteps = K // 64
    assert nsteps % 2 == 0
    vXg = [8 + j for j in range(2 * TM)]
    vWg = [8 + 2 * TM + j for j in range(2 * TN)]
    nb = 8 + 2 * TM + 2 * TN
    vXl, vXr, vWr = nb, nb + 1, nb + 2
    vXl1, vXr1, vWr1 = nb + 3, nb + 4, nb + 5
    nb += 6
    nb = (nb + 3) // 4 * 4
    stXs, stWs = [], []
    for _set in range(2):
        stXs.append([nb + 4 * j for j in range(2 * TM)])
        nb += 8 * TM
        stWs.append([nb + 4 * j for j in range(2 * TN)])
        nb += 8 * TN
    stX, stW = stXs[0] + stXs[1], stWs[0] + stWs[1]
    fr = []
    for s in range(2):
        xf = [nb + 4 * i for i in range(TM)]
        nb += 4 * TM
        wf = [nb + 4 * j for j in range(TN)]
        nb += 4 * TN
        fr.append((xf, wf))
    acc = {}
    for j in range(TN):
        for i in range(TM):
            acc[(j, i)] = nb
            nb += 16
    vtmp = nb
    nb += 12
    vmax = nb
    k(f"""
    v_and_b32 v1, 63, v0
    v_lshrrev_b32 v2, 6, v0
    v_and_b32 v3, 31, v0
    v_bfe_u32 v4, v0, 5, 1
    v_lshrrev_b32 v5, 3, v0
    v_and_b32 v6, 7, v0
    """)
    k(f"s_mul_i32 s18, s17, {BM * K * 2}")
    k(f"s_add_u32 s18, s18, 0x{x_off:x}")
    k(f"s_mul_i32 s19, s16, {BN * K * 2}")
    k(f"s_add_u32 s19, s19, 0x{w_off:x}")
    k(f"s_mov_b32 s20, {K * 2}")
    k(f"v_mul_lo_u32 v7, v5, s20")
    k(f"v_lshl_add_u32 v7, v6, 4, v7")
    for j in range(2 * TM):
        k(f"v_add_u32 v{vXg[j]}, s18, v7")
        if j:
            k(f"v_add_u32 v{vXg[j]}, 0x{32 * j * K * 2:x}, v{vXg[j]}")
    for j in range(2 * TN):
        k(f"v_add_u32 v{vWg[j]}, s19, v7")
        if j:
            k(f"v_add_u32 v{vWg[j]}, 0x{32 * j * K * 2:x}, v{vWg[j]}")
    k(f"s_movk_i32 s21, {ROWB}")
    k(f"v_mul_lo_u32 v{vXl}, v5, s21")
    k(f"v_lshl_add_u32 v{vXl}, v6, 4, v{vXl}")
    k(f"""
    v_lshrrev_b32 v7, 1, v2
    v_mul_u32_u24 v7, {32 * TM}, v7
    v_add_u32 v7, v7, v3
    v_mul_lo_u32 v{vXr}, v7, s21
    v_lshl_add_u32 v{vXr}, v4, 4, v{vXr}
    v_and_b32 v7, 1, v2
    v_mul_u32_u24 v7, {32 * TN}, v7
    v_add_u32 v7, v7, v3
    v_mul_lo_u32 v{vWr}, v7, s21
    v_lshl_add_u32 v{vWr}, v4, 4, v{vWr}
    v_add_u32 v{vWr}, {XT}, v{vWr}
    v_add_u32 v{vXl1}, {STG}, v{vXl}
    v_add_u32 v{vXr1}, {STG}, v{vXr}
    v_add_u32 v{vWr1}, {STG}, v{vWr}
    """)
    for key, r in acc.items():
        for q in range(16):
            k(f"v_mov_b32 v{r + q}, 0")
    def gloads(st):
        for j in range(2 * TM):
            k(f"buffer_load_dwordx4 v[{stXs[st][j]}:{stXs[st][j]+3}], v{vXg[j]}, s[4:7], s18 offen")
        for j in range(2 * TN):
            k(f"buffer_load_dwordx4 v[{stWs[st][j]}:{stWs[st][j]+3}], v{vWg[j]}, s[4:7], s18 offen")

    def lwrites(par, st):
        a = vXl1 if par else vXl
        for j in range(2 * TM):
            k(f"ds_write_b128 v{a}, v[{stXs[st][j]}:{stXs[st][j]+3}] offset:{32 * j * ROWB}")
        for j in range(2 * TN):
            k(f"ds_write_b128 v{a}, v[{stWs[st][j]}:{stWs[st][j]+3}] offset:{XT + 32 * j * ROWB}")

    def freads(par, kk, st):
        xf, wf = fr[st]
        ax = vXr1 if par else vXr
        aw = vWr1 if par else vWr
        for i in range(TM):
            k(f"ds_read_b128 v[{xf[i]}:{xf[i]+3}], v{ax} offset:{32 * i * ROWB + 32 * kk}")
        for j in range(TN):
            k(f"ds_read_b128 v[{wf[j]}:{wf[j]+3}], v{aw} offset:{32 * j * ROWB + 32 * kk}")

    def mfmas(st, swapped):
        xf, wf = fr[st]
        for j in range(TN):
            for i in range(TM):
                a = acc[(j, i)]
                if swapped:
                    k(f"v_mfma_f32_32x32x16_bf16 v[{a}:{a+15}], v[{xf[i]}:{xf[i]+3}], v[{wf[j]}:{wf[j]+3}], v[{a}:{a+15}]")
                else:
                    k(f"v_mfma_f32_32x32x16_bf16 v[{a}:{a+15}], v[{wf[j]}:{wf[j]+3}], v[{xf[i]}:{xf[i]+3}], v[{a}:{a+15}]")

    def kloop(swapped):
        nld = 2 * TM + 2 * TN
        lloop = k.lab("loop")
        k("s_mov_b32 s18, 0")
        gloads(0)
        k("s_movk_i32 s18, 128")
        gloads(1)
        k(f"s_waitcnt vmcnt({nld})")
        lwrites(0, 0)
        k("s_waitcnt lgkmcnt(0)")
        k("s_barrier")
        k("s_mov_b32 s22, 0")
        k(f"{lloop}:")
        for par in range(2):
            lsk = k.lab("skl")
            lsk2 = k.lab("sks")
            lsk3 = k.lab("skw")
            k("s_add_u32 s18, s18, 128")
            k(f"s_cmp_lt_u32 s22, {nsteps - 2 - par}")
            k(f"s_cbranch_scc0 {lsk}")
            gloads(par)
            k(f"{lsk}:")
            freads(par, 0, 0)
            for kk in range(4):
                if kk < 3:
                    freads(par, kk + 1, (kk + 1) % 2)
                    k(f"s_waitcnt lgkmcnt({TM + TN})")
                else:
                    k("s_waitcnt lgkmcnt(0)")
                mfmas(kk % 2, swapped)
            k(f"s_cmp_lt_u32 s22, {nsteps - 1 - par}")
            k(f"s_cbranch_scc0 {lsk2}")
            k(f"s_cmp_lt_u32 s22, {nsteps - 2 - par}")
            k(f"s_cbranch_scc0 {lsk3}")
            k(f"s_waitcnt vmcnt({nld})")
            k(f"{lsk3}:")
            k(f"s_cmp_lt_u32 s22, {nsteps - 2 - par}")
            lskv = k.lab("skv")
            k(f"s_cbranch_scc1 {lskv}")
            k("s_waitcnt vmcnt(0)")
            k(f"{lskv}:")
            lwrites(1 - par, 1 - par)
            k(f"{lsk2}:")
            k("s_waitcnt lgkmcnt(0)")
            k("s_barrier")
        k("s_add_u32 s22, s22, 2")
        k(f"s_cmp_lt_u32 s22, {nsteps}")
        k(f"s_cbranch_scc1 {lloop}")
        k("s_nop 15")

    ctx = dict(k=k, acc=acc, TM=TM, TN=TN, vtmp=vtmp, fr=fr, stX=stX, stW=stW)
    if epi == 'blockB':
        lsw = k.lab("swapped")
        ldone = k.lab("tdone")
        k("s_cmp_ge_u32 s16, 64")
        k(f"s_cbranch_scc1 {lsw}")
        kloop(False)
        epi_blockB(ctx, False)
        k(f"s_branch {ldone}")
        k(f"{lsw}:")
        kloop(True)
        epi_blockB(ctx, True)
        k(f"{ldone}:")
    elif epi == 'blockQ':
        kloop(False)
        epi_blockB(ctx, False)
    else:
        kloop(False)
        if epi == 'res':
            epi_res(ctx, BM, BN)
        elif epi == 'qkvA':
            epi_qkvA(ctx)
    return vmax


def _wave_mn(k, TM, TN, dst_wm, dst_wn):
    k(f"v_lshrrev_b32 {dst_wm}, 1, v2")
    k(f"v_and_b32 {dst_wn}, 1, v2")


def epi_blockB(ctx, swapped):
    k, acc, TM, TN, vt = ctx['k'], ctx['acc'], ctx['TM'], ctx['TN'], ctx['vtmp']
    assert TM == 2 and TN == 2
    base = {0: L.QB, 1: L.KB}
    k(f"""
    v_lshrrev_b32 v{vt}, 1, v2
    v_and_b32 v{vt+1}, 1, v2
    s_and_b32 s24, s16, 31
    s_lshl_b32 s25, s17, 2
    """)
    if not swapped:
        k(f"""
        v_lshlrev_b32 v{vt+2}, 8, v3
        v_lshl_add_u32 v{vt+2}, v{vt+1}, 7, v{vt+2}
        v_lshl_add_u32 v{vt+2}, v4, 3, v{vt+2}
        v_lshl_add_u32 v{vt+2}, v{vt}, 19, v{vt+2}
        s_mov_b32 s26, 0x{L.QB:x}
        s_mov_b32 s27, 0x{L.KB:x}
        s_cmp_lt_u32 s16, 32
        s_cselect_b32 s26, s26, s27
        """)
    else:
        k(f"""
        v_lshlrev_b32 v{vt+2}, 6, v3
        v_lshl_add_u32 v{vt+2}, v{vt+1}, 12, v{vt+2}
        v_lshl_add_u32 v{vt+2}, v4, 3, v{vt+2}
        v_lshl_add_u32 v{vt+2}, v{vt}, 19, v{vt+2}
        s_mov_b32 s26, 0x{L.VBT:x}
        """)
    for i in range(2):
        k(f"s_add_u32 s{27+i}, s25, {i}")
        k(f"s_lshl_b32 s{27+i}, s{27+i}, 5")
        k(f"s_add_u32 s{27+i}, s{27+i}, s24")
        k(f"s_lshl_b32 s{27+i}, s{27+i}, 13")
        k(f"s_add_u32 s{27+i}, s{27+i}, s26")
    for j in range(2):
        for i in range(2):
            a = acc[(j, i)]
            for g4 in range(4):
                r = a + 4 * g4
                k(f"v_cvt_pk_bf16_f32 v{vt+4}, v{r}, v{r+1}")
                k(f"v_cvt_pk_bf16_f32 v{vt+5}, v{r+2}, v{r+3}")
                if not swapped:
                    imm = (32 * j + 8 * g4) * 2
                else:
                    imm = 2048 * j + 16 * g4
                k(f"buffer_store_dwordx2 v[{vt+4}:{vt+5}], v{vt+2}, s[4:7], s{27+i} offen offset:{imm}")
                k("s_nop 0")


def epi_res(ctx, BM, BN):
    k, acc, TM, TN, vt = ctx['k'], ctx['acc'], ctx['TM'], ctx['TN'], ctx['vtmp']
    stX, stW = ctx['stX'], ctx['stW']
    k(f"""
    v_lshrrev_b32 v{vt}, 1, v2
    v_and_b32 v{vt+1}, 1, v2
    s_mul_i32 s24, s17, {BM}
    v_mul_u32_u24 v{vt+2}, {32*TM}, v{vt}
    v_add3_u32 v{vt+2}, v{vt+2}, v3, s24
    v_lshlrev_b32 v{vt+2}, 10, v{vt+2}
    s_mul_i32 s25, s16, {BN*2}
    v_mul_u32_u24 v{vt+3}, {32*TN*2}, v{vt+1}
    v_add3_u32 v{vt+2}, v{vt+2}, v{vt+3}, s25
    v_lshl_add_u32 v{vt+2}, v4, 3, v{vt+2}
    s_mov_b32 s26, 0x{L.X:x}
    s_add_u32 s27, s26, 0x8000
    s_movk_i32 s28, 0
    s_mov_b32 s29, 0x8000
    """)
    dst = []
    pool = []
    for b in stX + stW:
        pool += [b, b + 2]
    for s in range(2):
        for b in ctx['fr'][s][0] + ctx['fr'][s][1]:
            pool += [b, b + 2]
    idx = 0
    plan = []
    for j in range(TN):
        for i in range(TM):
            for g4 in range(4):
                d = pool[idx]
                idx += 1
                imm = (32 * j + 8 * g4) * 2
                plan.append((j, i, g4, d, imm))
                k(f"buffer_load_dwordx2 v[{d}:{d+1}], v{vt+2}, s[4:7], s{26+i} offen offset:{imm}")
    n = len(plan)
    for t, (j, i, g4, d, imm) in enumerate(plan):
        r = acc[(j, i)] + 4 * g4
        k(f"s_waitcnt vmcnt({min(63, n - 1 - t + 2 * t)})") if False else None
        k(f"s_waitcnt vmcnt({n - 1 - t})") if t == 0 or True else None
        for q in range(4):
            k(f"v_cvt_pk_bf16_f32 v{r+q}, v{r+q}, v{r+q}")
            k(f"v_lshlrev_b32 v{r+q}, 16, v{r+q}")
        k(f"v_lshlrev_b32 v{vt+4}, 16, v{d}")
        k(f"v_and_b32 v{vt+5}, 0xffff0000, v{d}")
        k(f"v_lshlrev_b32 v{vt+6}, 16, v{d+1}")
        k(f"v_and_b32 v{vt+7}, 0xffff0000, v{d+1}")
        for q in range(4):
            k(f"v_add_f32 v{vt+4+q}, v{vt+4+q}, v{r+q}")
        k(f"v_cvt_pk_bf16_f32 v{d}, v{vt+4}, v{vt+5}")
        k(f"v_cvt_pk_bf16_f32 v{d+1}, v{vt+6}, v{vt+7}")
    for t, (j, i, g4, d, imm) in enumerate(plan):
        k(f"buffer_store_dwordx2 v[{d}:{d+1}], v{vt+2}, s[4:7], s{26+i} offen offset:{imm}")
        k(f"buffer_store_dwordx2 v[{d}:{d+1}], v{vt+2}, s[12:15], s{28+i} offen offset:{imm}")


def epi_qkvA(ctx):
    k, acc, TM, TN, vt = ctx['k'], ctx['acc'], ctx['TM'], ctx['TN'], ctx['vtmp']
    assert TM == 2 and TN == 2
    lkv = k.lab("kv")
    lend2 = k.lab("qend")
    k(f"""
    v_lshrrev_b32 v{vt}, 1, v2
    v_and_b32 v{vt+1}, 1, v2
    s_lshl_b32 s24, s17, 7
    v_lshlrev_b32 v{vt+2}, 6, v{vt}
    v_add3_u32 v{vt+2}, v{vt+2}, v3, s24          ; tok (i=0)
    s_cmp_eq_u32 s16, 4
    s_cbranch_scc1 {lkv}
    v_lshlrev_b32 v{vt+3}, 10, v{vt+2}
    s_lshl_b32 s25, s16, 8
    v_lshl_add_u32 v{vt+3}, v{vt+1}, 7, v{vt+3}
    v_lshl_add_u32 v{vt+3}, v4, 3, v{vt+3}
    v_add_u32 v{vt+3}, s25, v{vt+3}
    s_mov_b32 s26, 0x{L.QA:x}
    s_add_u32 s27, s26, 0x8000
    """)
    for j in range(2):
        for i in range(2):
            a = acc[(j, i)]
            for g4 in range(4):
                r = a + 4 * g4
                k(f"v_cvt_pk_bf16_f32 v{vt+4}, v{r}, v{r+1}")
                k(f"v_cvt_pk_bf16_f32 v{vt+5}, v{r+2}, v{r+3}")
                k(f"buffer_store_dwordx2 v[{vt+4}:{vt+5}], v{vt+3}, s[4:7], s{26+i} offen offset:{(32*j+8*g4)*2}")
                k("s_nop 0")
    k(f"s_branch {lend2}")
    k(f"{lkv}:")
    k(f"""
    v_readfirstlane_b32 s25, v{vt+1}
    s_nop 3
    s_cmp_eq_u32 s25, 0
    s_cbranch_scc0 {lend2}
    v_lshlrev_b32 v{vt+3}, 5, v{vt+2}
    v_lshl_add_u32 v{vt+3}, v4, 3, v{vt+3}
    s_mov_b32 s26, 0x{L.KA:x}
    s_add_u32 s27, s26, 0x400
    v_lshlrev_b32 v{vt+6}, 1, v{vt+2}
    v_lshl_add_u32 v{vt+6}, v4, 14, v{vt+6}
    s_mov_b32 s28, 0x{L.VAT:x}
    s_add_u32 s29, s28, 64
    """)
    for i in range(2):
        a = acc[(0, i)]
        for g4 in range(2):
            r = a + 4 * g4
            k(f"v_cvt_pk_bf16_f32 v{vt+4}, v{r}, v{r+1}")
            k(f"v_cvt_pk_bf16_f32 v{vt+5}, v{r+2}, v{r+3}")
            k(f"buffer_store_dwordx2 v[{vt+4}:{vt+5}], v{vt+3}, s[4:7], s{26+i} offen offset:{16*g4}")
            k("s_nop 0")
        for g4 in range(2, 4):
            r = a + 4 * g4
            for q in range(4):
                d = 8 * (g4 - 2) + q
                k(f"v_cvt_pk_bf16_f32 v{vt+4}, v{r+q}, v{r+q}")
                k(f"v_add_u32 v{vt+7}, 0x{d*4096:x}, v{vt+6}")
                k(f"buffer_store_short v{vt+4}, v{vt+7}, s[4:7], s{28+i} offen")
    k(f"{lend2}:")


def dec_g1(k):
    k("s_lshr_b32 s16, s2, 4")
    k("s_and_b32 s17, s2, 15")


def dec_g3(k):
    k("""
    s_and_b32 s16, s2, 7
    s_lshl_b32 s16, s16, 3
    s_add_u32 s16, s16, 32
    s_lshr_b32 s17, s2, 7
    s_add_u32 s16, s16, s17
    s_lshr_b32 s17, s2, 3
    s_and_b32 s17, s17, 15
    """)


def dec_res(k):
    k("""
    s_lshr_b32 s16, s2, 5
    s_lshr_b32 s17, s2, 3
    s_and_b32 s17, s17, 3
    s_lshl_b32 s17, s17, 3
    s_and_b32 s24, s2, 7
    s_add_u32 s17, s17, s24
    """)


def g1():
    return k_gemm("g1_kernel", L.HN, L.WT_AQKV, 512, 5, 16, 2, 2, 'qkvA', dec_g1)


def g2():
    return k_gemm("g2_kernel", L.OA, L.WT_AO, 512, 8, 32, 1, 1, 'res', dec_res)


def g3():
    return k_gemm("g3_kernel", L.HN, L.WT_BQKV, 512, 64, 16, 2, 2, 'blockB', dec_g3)


def dec_res2(k):
    k("""
    s_lshr_b32 s16, s2, 4
    s_lshr_b32 s17, s2, 3
    s_and_b32 s17, s17, 1
    s_lshl_b32 s17, s17, 3
    s_and_b32 s24, s2, 7
    s_add_u32 s17, s17, s24
    """)


def g4():
    return k_gemm("g4_kernel", L.OB, L.WT_BO, 4096, 8, 32, 1, 1, 'res', dec_res)
```

```python
def _al(x, a=65536):
    return (x + a - 1) // a * a

_off = 0
def _alloc(n):
    global _off
    o = _off
    _off = _al(_off + n)
    return o

S = 2048
D = 512
WT_AQKV = _alloc(544 * 512 * 2)
WT_AO = _alloc(512 * 512 * 2)
WT_BQKV = _alloc(12288 * 512 * 2)
WT_BO = _alloc(512 * 4096 * 2)
X = _alloc(S * D * 2)
HN = _alloc(S * D * 2)
QA = _alloc(S * 512 * 2)
KA = _alloc(S * 16 * 2)
VAT = _alloc(16 * S * 2)
OA = _alloc(S * 512 * 2)
QB = _alloc(S * 4096 * 2)
KB = _alloc(S * 4096 * 2)
VBT = _alloc(S * 4096 * 2)
OB = _alloc(S * 4096 * 2)
KM = _alloc(64 * 32 * 8 * 128 * 2)
VMT = _alloc(64 * 32 * 128 * 8 * 2)
ACC = _alloc(64 * 8 * 512 * 4)
CNT = _alloc(64 * 8 * 128)
ZERO_LO = ACC
ZERO_BYTES = CNT + 64 * 8 * 128 - ACC
WS_USED = _off

PBUF = ACC
FLAG1 = CNT
FLAG2 = CNT + 256
TK = CNT + 1024
WK = CNT + 2048
MBUF = CNT + 8192
```

```python
import sys, importlib
sys.path.insert(0, "dev")
from asmlib import *
import k_basic, k_gemm, k_attn, k_chain

KNAME = "interleave_layers__grouped_kv_mqa__memory_aug_recurrent_mem_tr__prompt"
ref = open(f"cdna_kernels/{KNAME}.s.ref").read().split("\n")
header = [l for l in ref if l.startswith(";") and "@launch" not in l and "Override launch" not in l and "grid=ceil" not in l]

def build(diag=False):
    kt = k_basic.k_transpose()
    kln = k_basic.k_ln()
    g1 = k_gemm.g1(); g2 = k_gemm.g2(); g3 = k_gemm.g3(); g4 = k_gemm.g4()
    aa = k_attn.k_attn_a()
    ch = k_chain.k_chain(diag)
    ab = k_attn.k_attn_b()
    kernels = [kt, kln, g1, g2, g3, g4, aa, ch, ab]
    layer = [kln, g1, aa, g2, kln, g3, ch, ab, g4]
    launches = [kt] + layer + layer
    return emit_file(kernels, launches, header)

if __name__ == "__main__":
    diag = "--diag" in sys.argv
    args = [a for a in sys.argv[1:] if not a.startswith("--")]
    out = args[0] if args else f"cdna_kernels/{KNAME}.s"
    open(out, "w").write(build(diag))
    print("wrote", out)
```
